```python
import torch

def _softmax(x, axis=-1):
    return torch.softmax(x, dim=axis)
def _gelu(x):
    return torch.nn.functional.gelu(x, approximate="tanh")
def _silu(x):
    return torch.nn.functional.silu(x)
def _sigmoid(x):
    return torch.sigmoid(x)
def _layernorm(x, axis=-1, eps=1e-5):
    m = x.mean(dim=axis, keepdim=True)
    v = x.var(dim=axis, keepdim=True, unbiased=False)
    return (x - m) / torch.sqrt(v + eps)
def _scatter_add(tgt, idx, src, axis=0):
    return tgt.clone().index_add_(axis, idx, src)
def _segment_sum(src, seg, n):
    out = torch.zeros((n,) + src.shape[1:], dtype=src.dtype)
    return out.index_add_(0, seg, src)
def _pad(x, pw):
    flat = tuple(v for pair in reversed(pw) for v in pair)
    return torch.nn.functional.pad(x, flat)

kernel_name = 'concat_heads__mha_block_cached__mha_block_cached__near_ridge'

def setup_inputs():

    _w = (lambda a: (lambda t: t.to(torch.bfloat16) if t.is_floating_point() else t)(torch.as_tensor(a)))
    def _A_setup():
        B, Sq, D = 32, 64, 512
        H, Sk, Dh = 32, 512, 128
        return {
            "x": _w((lambda *s: torch.randn(*s, dtype=torch.bfloat16) * 0.8)(B, Sq, D)),
            "k_cache": _w((lambda *s: torch.randn(*s, dtype=torch.bfloat16) * 0.8)(B, H, Sk, Dh)),
            "v_cache": _w((lambda *s: torch.randn(*s, dtype=torch.bfloat16) * 0.05)(B, H, Sk, Dh)),
            "wq": _w((lambda *s: torch.randn(*s, dtype=torch.bfloat16) * 0.8)(D, H * Dh) * (D ** -0.5)),
            "wo": _w((lambda *s: torch.randn(*s, dtype=torch.bfloat16) * 0.05)(H * Dh, D) * ((H * Dh) ** -0.5)),
        }
    _A_in = _A_setup()

    def _B_setup():
        B, Sq, D = 32, 64, 512
        H, Sk, Dh = 32, 512, 128
        return {
            "x": _w((lambda *s: torch.randn(*s, dtype=torch.bfloat16) * 0.8)(B, Sq, D)),
            "k_cache": _w((lambda *s: torch.randn(*s, dtype=torch.bfloat16) * 0.8)(B, H, Sk, Dh)),
            "v_cache": _w((lambda *s: torch.randn(*s, dtype=torch.bfloat16) * 0.05)(B, H, Sk, Dh)),
            "wq": _w((lambda *s: torch.randn(*s, dtype=torch.bfloat16) * 0.8)(D, H * Dh) * (D ** -0.5)),
            "wo": _w((lambda *s: torch.randn(*s, dtype=torch.bfloat16) * 0.05)(H * Dh, D) * ((H * Dh) ** -0.5)),
        }
    _B_in = _B_setup()

    return {
        "A_x": _A_in["x"],
        "A_k_cache": _A_in["k_cache"],
        "A_v_cache": _A_in["v_cache"],
        "A_wq": _A_in["wq"],
        "A_wo": _A_in["wo"],
        "B_x": _B_in["x"],
        "B_k_cache": _B_in["k_cache"],
        "B_v_cache": _B_in["v_cache"],
        "B_wq": _B_in["wq"],
        "B_wo": _B_in["wo"],
    }

def reference(A_x, A_k_cache, A_v_cache, A_wq, A_wo, B_x, B_k_cache, B_v_cache, B_wq, B_wo):
    def _A_ref(x, k_cache, v_cache, wq, wo):
        B, Sq, D = x.shape
        H, Dh = 32, 128
        q = (lambda x, *d: x.permute(*d))((x @ wq).reshape(B, Sq, H, Dh), 0, 2, 1, 3)
        scores = torch.einsum("bhqd,bhkd->bhqk", q, k_cache) * (Dh ** -0.5)
        p = _softmax(scores, axis=-1)
        o = torch.einsum("bhqk,bhkd->bhqd", p, v_cache)
        return (lambda x, *d: x.permute(*d))(o, 0, 2, 1, 3).reshape(B, Sq, H * Dh) @ wo

    def _B_ref(x, k_cache, v_cache, wq, wo):
        B, Sq, D = x.shape
        H, Dh = 32, 128
        q = (lambda x, *d: x.permute(*d))((x @ wq).reshape(B, Sq, H, Dh), 0, 2, 1, 3)
        scores = torch.einsum("bhqd,bhkd->bhqk", q, k_cache) * (Dh ** -0.5)
        p = _softmax(scores, axis=-1)
        o = torch.einsum("bhqk,bhkd->bhqd", p, v_cache)
        return (lambda x, *d: x.permute(*d))(o, 0, 2, 1, 3).reshape(B, Sq, H * Dh) @ wo

    a = _A_ref(A_x, A_k_cache, A_v_cache, A_wq, A_wo)
    b = _B_ref(B_x, B_k_cache, B_v_cache, B_wq, B_wo)
    return torch.concatenate([a, b], axis=-1)
```

```python
import sys, struct, math

KN = "concat_heads__mha_block_cached__mha_block_cached__near_ridge_kernel"
RN = "mha_reduce_kernel"

def f2u(x):
    return struct.unpack("<I", struct.pack("<f", x))[0]

class Em:
    def __init__(self):
        self.blocks = []
        self.cur = []
        self.vm = []
        self.lg = []
        self.nlabel = 0
    def e(self, s):
        self.cur.append(s)
    def vmem(self, s, tag):
        self.cur.append(s); self.vm.append(tag)
    def lds(self, s, tag="x"):
        self.cur.append(s); self.lg.append(tag)
        assert len(self.lg) <= 15, "too many lds outstanding"
    def wait_vm(self, tag):
        idxs = [i for i, t in enumerate(self.vm) if t == tag]
        if not idxs:
            return
        idx = max(idxs)
        n = len(self.vm) - 1 - idx
        assert n <= 63
        self.cur.append("s_waitcnt vmcnt(%d)" % n)
        self.vm = self.vm[idx + 1:]
    def wait_vm_all(self):
        self.cur.append("s_waitcnt vmcnt(0)"); self.vm = []
    def wait_lg(self, tag):
        idxs = [i for i, t in enumerate(self.lg) if t == tag]
        if not idxs:
            return
        idx = max(idxs)
        n = len(self.lg) - 1 - idx
        self.cur.append("s_waitcnt lgkmcnt(%d)" % n)
        self.lg = self.lg[idx + 1:]
    def wait_lg_all(self):
        self.cur.append("s_waitcnt lgkmcnt(0)"); self.lg = []
    def cut(self, kind="seq"):
        if self.cur:
            self.blocks.append((kind, self.cur))
        self.cur = []
    def render(self, cnt_sgpr):
        self.cut()
        out = []
        i = 0
        B = self.blocks
        while i < len(B):
            kind, txt = B[i]
            j = i + 1
            if kind == "iter":
                while j < len(B) and B[j][0] == "iter" and B[j][1] == txt:
                    j += 1
            n = j - i
            if n > 1:
                self.nlabel += 1
                lab = "L_loop%d" % self.nlabel
                out.append("s_mov_b32 s%d, %d" % (cnt_sgpr, n))
                out.append(".p2align 3")
                out.append(lab + ":")
                out += [t.replace("@U@", "l%d" % self.nlabel) for t in txt]
                out.append("s_sub_u32 s%d, s%d, 1" % (cnt_sgpr, cnt_sgpr))
                out.append("s_cmp_lg_u32 s%d, 0" % cnt_sgpr)
                out.append("s_cbranch_scc1 " + lab)
                self.uses.append("l%d" % self.nlabel) if any("@U@" in t for t in txt) else None
            else:
                self.nlabel += 1
                out += [t.replace("@U@", "l%d" % self.nlabel) for t in txt]
                self.uses.append("l%d" % self.nlabel) if any("@U@" in t for t in txt) else None
            i = j
        return out

sK, sV, sWq, sWo, sX, sWs = 4, 8, 12, 16, 20, 24
sWave, sB, sP, sG = 28, 29, 30, 31
sLds = 32
sKoff, sVoff = 33, 34
sWoff = 35
sXoff = 58
sT0, sT1, sT2 = 59, 60, 61
sC = 62
sCnt = 63
sTile = 64
sTileC = 65
sWoBase = 66
sTraw = 67
sOutOff = 68
vLane = 1
vKrd = 2
vTrV = 10
vTrQ = 14
vDmaK = 18
vDmaV = 22
vDmaWq = 23
vDmaWo = 24
vX = 25
vEx = 26
vExR = 27
vExW = 28
vM = 29
vThr = 30
vMc0, vMc1 = 31, 32
vT0, vT1, vT2, vT3 = 33, 34, 35, 36
vL = 40
vQf = 48
vS = 112
vP = 144
vA = 160
vBf = 224
vTmp = 240
aO = 0
aQ = 128

SLOT_K, SLOT_V, SLOT_W, SLOT_E0, SLOT_E1 = 0, 8192, 16384, 24576, 32768
WAVE_LDS = 40960

SCALE = 128 ** -0.5
CLOG = SCALE * math.log2(math.e)
TLOG2 = 10.0

def vr(b, n=4): return "v[%d:%d]" % (b, b + n - 1)
def ar(b, n=16): return "a[%d:%d]" % (b, b + n - 1)

g = Em()
g.uses = []
e = g.e

def dma_kv(kind, slot, tag):
    srd = sK if kind == "K" else sV
    off = sKoff if kind == "K" else sVoff
    for i in range(8):
        if i % 4 == 0:
            e("s_add_u32 m0, s%d, %d" % (sLds, slot + (i // 4) * 4096))
            e("s_add_u32 s%d, s%d, %d" % (sT0, off, (i // 4) * 4096))
        vo = vDmaK + (i & 3) if kind == "K" else vDmaV
        g.vmem("buffer_load_dwordx4 v%d, s[%d:%d], s%d offen offset:%d nt lds" % (vo, srd, srd + 3, sT0, (i & 3) * 1024), tag)
    e("s_add_u32 s%d, s%d, 8192" % (off, off))

def dma_wq(slot, xbuf, tag):
    for i in range(8):
        if i % 4 == 0:
            e("s_add_u32 m0, s%d, %d" % (sLds, slot + (i // 4) * 4096))
        e("s_add_u32 s%d, s%d, %d" % (sT0, sWoff, i * 32768 - (i & 3) * 1024))
        g.vmem("buffer_load_dwordx4 v%d, s[%d:%d], s%d offen offset:%d lds" % (vDmaWq, sWq, sWq + 3, sT0, (i & 3) * 1024), tag)
    e("s_add_u32 s%d, s%d, 262144" % (sWoff, sWoff))
    e("s_add_u32 s%d, s%d, 32768" % (sT0, sXoff))
    for u in range(2):
        for qt in range(2):
            g.vmem("buffer_load_dwordx4 %s, v%d, s[%d:%d], s%d offen offset:%d" %
                   (vr(xbuf + (u * 2 + qt) * 4), vX, sX, sX + 3, sXoff if qt == 0 else sT0, u * 32), tag)
    e("s_add_u32 s%d, s%d, 64" % (sXoff, sXoff))

def dma_wo(slot, tag):
    e("s_lshr_b32 s%d, s%d, 2" % (sT1, sTile))
    e("s_lshl_b32 s%d, s%d, 18" % (sT1, sT1))
    e("s_and_b32 s%d, s%d, 3" % (sT2, sTile))
    e("s_lshl_b32 s%d, s%d, 15" % (sT2, sT2))
    e("s_add_u32 s%d, s%d, s%d" % (sT1, sT1, sT2))
    e("s_add_u32 s%d, s%d, s%d" % (sT1, sT1, sWoBase))
    for i in range(8):
        if i % 4 == 0:
            e("s_add_u32 m0, s%d, %d" % (sLds, slot + (i // 4) * 4096))
        e("s_add_u32 s%d, s%d, %d" % (sT0, sT1, i * 4096 - (i & 3) * 1024))
        g.vmem("buffer_load_dwordx4 v%d, s[%d:%d], s%d offen offset:%d lds" % (vDmaWo, sWo, sWo + 3, sT0, (i & 3) * 1024), tag)
    e("s_add_u32 s%d, s%d, 1" % (sTile, sTile))

def pipelined(frags, depth):
    n = len(frags)
    for f in range(min(depth, n)):
        for r in frags[f][0]:
            g.lds(r, "f%d" % f)
    for f in range(n):
        g.wait_lg("f%d" % f)
        for m in frags[f][1]:
            e(m)
        if f + depth < n:
            for r in frags[f + depth][0]:
                g.lds(r, "f%d" % (f + depth))

def tr_stage(slot, pattern, acc, bfrag):
    frags = []
    base = vTrV if pattern == "V" else vTrQ
    second = 2048 if pattern == "V" else 1024
    k = 0
    for u in range(2):
        for t in range(4):
            a = vA + (k % 16) * 4
            k += 1
            reads = ["ds_read_b64_tr_b16 v[%d:%d], v%d offset:%d" % (a, a + 1, base + t, slot + u * 4096),
                     "ds_read_b64_tr_b16 v[%d:%d], v%d offset:%d" % (a + 2, a + 3, base + t, slot + u * 4096 + second)]
            mf = []
            for qt in range(2):
                d = ar(acc + (t * 2 + qt) * 16)
                mf.append("v_mfma_f32_32x32x16_bf16 %s, %s, %s, %s" % (d, vr(a), vr(bfrag(u, qt)), d))
            frags.append((reads, mf))
    pipelined(frags, 6)

def s_stage():
    frags = []
    for s in range(8):
        a = vA + 32 + s * 4
        reads = ["ds_read_b128 %s, v%d offset:%d" % (vr(a), vKrd + s, SLOT_K)]
        mf = []
        for qt in range(2):
            d = vr(vS + qt * 16, 16)
            mf.append("v_mfma_f32_32x32x16_bf16 %s, %s, %s, %s" % (d, vr(a), vr(vQf + (s * 2 + qt) * 4), d if s else "0"))
        frags.append((reads, mf))
    pipelined(frags, 8)

def softmax():
    e("s_nop 7"); e("s_nop 7")
    for qt, t in ((0, vT0), (1, vT1)):
        pass
    S = lambda qt, i: vS + qt * 16 + i
    e("v_max3_f32 v%d, v%d, v%d, v%d" % (vT0, S(0, 0), S(0, 1), S(0, 2)))
    e("v_max3_f32 v%d, v%d, v%d, v%d" % (vT1, S(1, 0), S(1, 1), S(1, 2)))
    for i in range(3, 15, 2):
        e("v_max3_f32 v%d, v%d, v%d, v%d" % (vT0, vT0, S(0, i), S(0, i + 1)))
        e("v_max3_f32 v%d, v%d, v%d, v%d" % (vT1, vT1, S(1, i), S(1, i + 1)))
    e("v_max_f32 v%d, v%d, v%d" % (vT0, vT0, S(0, 15)))
    e("v_max_f32 v%d, v%d, v%d" % (vT1, vT1, S(1, 15)))
    e("s_nop 1")
    e("v_permlane32_swap_b32 v%d, v%d" % (vT0, vT1))
    e("s_nop 1")
    e("v_max_f32 v%d, v%d, v%d" % (vT2, vT0, vT1))
    e("v_cmp_gt_f32 vcc, v%d, v%d" % (vT2, vThr))
    e("s_nop 4")
    e("s_cbranch_vccnz L_rare_@U@")
    e("L_back_@U@:")
    for i in range(16):
        for qt in range(2):
            e("v_fma_f32 v%d, v%d, s%d, -v%d" % (S(qt, i), S(qt, i), sC, vMc0 + qt))
    for i in range(16):
        for qt in range(2):
            e("v_exp_f32 v%d, v%d" % (S(qt, i), S(qt, i)))
    e("s_nop 0")
    for i in range(16):
        for qt in range(2):
            e("v_add_f32 v%d, v%d, v%d" % (vL + qt * 4 + (i & 3), vL + qt * 4 + (i & 3), S(qt, i)))
    for qt in range(2):
        for u in range(2):
            for k in range(4):
                e("v_cvt_pk_bf16_f32 v%d, v%d, v%d" % (vP + (qt * 2 + u) * 4 + k, S(qt, 8 * u + 2 * k), S(qt, 8 * u + 2 * k + 1)))

def rare_path(u):
    o = []
    a = o.append
    a("L_rare_%s:" % u)
    a("v_max_f32 v%d, v%d, v%d" % (vT2, vT2, vM))
    a("v_sub_f32 v%d, v%d, v%d" % (vT0, vM, vT2))
    a("v_mul_f32 v%d, s%d, v%d" % (vT0, sC, vT0))
    a("v_exp_f32 v%d, v%d" % (vT0, vT0))
    a("v_mov_b32 v%d, v%d" % (vM, vT2))
    a("v_add_f32 v%d, s%d, v%d" % (vThr, sTraw, vT2))
    a("v_mul_f32 v%d, s%d, v%d" % (vMc0, sC, vT2))
    a("v_mov_b32 v%d, v%d" % (vT1, vT0))
    a("v_mov_b32 v%d, v%d" % (vMc1, vMc0))
    a("s_nop 1")
    a("v_permlane32_swap_b32 v%d, v%d" % (vT0, vT1))
    a("v_permlane32_swap_b32 v%d, v%d" % (vMc0, vMc1))
    a("s_nop 1")
    for qt in range(2):
        for k in range(4):
            a("v_mul_f32 v%d, v%d, v%d" % (vL + qt * 4 + k, vL + qt * 4 + k, vT0 + qt))
    for t in range(4):
        for qt in range(2):
            b = aO + (t * 2 + qt) * 16
            for i in range(16):
                a("v_accvgpr_read_b32 v%d, a%d" % (vTmp + i, b + i))
            for i in range(16):
                a("v_mul_f32 v%d, v%d, v%d" % (vTmp + i, vTmp + i, vT0 + qt))
            for i in range(16):
                a("v_accvgpr_write_b32 a%d, v%d" % (b + i, vTmp + i))
    a("s_nop 1")
    a("s_branch L_back_%s" % u)
    return o

def init_head():
    for i in range(128):
        e("v_accvgpr_write_b32 a%d, 0" % (aO + i))
    for i in range(8):
        e("v_mov_b32 v%d, 0" % (vL + i))
    e("v_mov_b32 v%d, 0x%08x" % (vM, f2u(-1e30)))
    e("v_mov_b32 v%d, 0x%08x" % (vThr, f2u(-1e30)))
    e("v_mov_b32 v%d, 0" % vMc0)
    e("v_mov_b32 v%d, 0" % vMc1)

def zero_q():
    for i in range(128):
        e("v_accvgpr_write_b32 a%d, 0" % (aQ + i))

def q_convert():
    e("s_nop 7"); e("s_nop 7")
    for t in range(4):
        for qt in range(2):
            b = aQ + (t * 2 + qt) * 16
            for i in range(16):
                e("v_accvgpr_read_b32 v%d, a%d" % (vTmp + i, b + i))
            for u in range(2):
                for k in range(4):
                    e("v_cvt_pk_bf16_f32 v%d, v%d, v%d" % (vQf + ((2 * t + u) * 2 + qt) * 4 + k, vTmp + 8 * u + 2 * k, vTmp + 8 * u + 2 * k + 1))

def finalize_head():
    e("s_nop 7"); e("s_nop 7")
    for qt in range(2):
        e("v_add_f32 v%d, v%d, v%d" % (vL + qt * 4, vL + qt * 4, vL + qt * 4 + 1))
        e("v_add_f32 v%d, v%d, v%d" % (vL + qt * 4 + 2, vL + qt * 4 + 2, vL + qt * 4 + 3))
    for qt in range(2):
        e("v_add_f32 v%d, v%d, v%d" % (vT0 + qt, vL + qt * 4, vL + qt * 4 + 2))
    e("s_nop 1")
    e("v_permlane32_swap_b32 v%d, v%d" % (vT0, vT1))
    e("s_nop 1")
    e("v_add_f32 v%d, v%d, v%d" % (vT0, vT0, vT1))
    e("v_rcp_f32 v%d, v%d" % (vT0, vT0))
    e("s_nop 1")
    e("v_mov_b32 v%d, v%d" % (vT1, vT0))
    e("s_nop 1")
    e("v_permlane32_swap_b32 v%d, v%d" % (vT0, vT1))
    e("s_nop 1")
    for t in range(4):
        for qt in range(2):
            b = aO + (t * 2 + qt) * 16
            for i in range(16):
                e("v_accvgpr_read_b32 v%d, a%d" % (vTmp + i, b + i))
            for i in range(16):
                e("v_mul_f32 v%d, v%d, v%d" % (vTmp + i, vTmp + i, vT0 + qt))
            pk = vA + ((t * 2 + qt) % 4) * 8
            for k in range(8):
                e("v_cvt_pk_bf16_f32 v%d, v%d, v%d" % (pk + k, vTmp + 2 * k, vTmp + 2 * k + 1))
            for u in range(2):
                g.lds("ds_write_b128 v%d, %s offset:%d" % (vExW, vr(pk + 4 * u), ((2 * t + u) * 2 + qt) * 1024), "w")
            if (t * 2 + qt) % 4 == 3:
                g.wait_lg_all()

def ex_read():
    e("s_lshr_b32 s%d, s%d, 2" % (sT1, sTileC))
    e("s_mul_i32 s%d, s%d, %d" % (sT1, sT1, WAVE_LDS))
    e("s_and_b32 s%d, s%d, 3" % (sT2, sTileC))
    e("s_lshl_b32 s%d, s%d, 12" % (sT2, sT2))
    e("s_add_u32 s%d, s%d, s%d" % (sT1, sT1, sT2))
    e("v_add_u32 v%d, s%d, v%d" % (vExR, sT1, vEx))
    e("s_add_u32 s%d, s%d, 1" % (sTileC, sTileC))
    for k in range(4):
        g.lds("ds_read_b128 %s, v%d offset:%d" % (vr(vBf + 4 * k), vExR, SLOT_E0 + k * 1024), "b")

hdr = []
h = hdr.append
h("; @launch kernel=%s grid=(256,1,1) block=(256,1,1) lds=163840" % KN)
h("; @launch kernel=%s grid=(512,1,1) block=(256,1,1) lds=0" % RN)
h('.amdgcn_target "amdgcn-amd-amdhsa--gfx950"')
h(".text"); h(".globl " + KN); h(".p2align 8"); h(".type %s,@function" % KN); h(KN + ":")

e("s_cmp_ge_u32 s2, 256"); e("s_cbranch_scc1 L_end")
e("s_load_dwordx16 s[36:51], s[0:1], 0")
e("s_load_dwordx4 s[52:55], s[0:1], 64")
e("s_load_dwordx2 s[56:57], s[0:1], 96")
e("v_lshrrev_b32 v%d, 6, v0" % vT0)
e("v_and_b32 v%d, 63, v0" % vLane)
e("s_nop 0")
e("v_readfirstlane_b32 s%d, v%d" % (sWave, vT0))
e("s_lshr_b32 s%d, s2, 3" % sB)
e("s_lshr_b32 s%d, s2, 2" % sP); e("s_and_b32 s%d, s%d, 1" % (sP, sP))
e("s_and_b32 s%d, s2, 3" % sG)
e("s_mul_i32 s%d, s%d, %d" % (sLds, sWave, WAVE_LDS))
e("s_mov_b32 s%d, 0x%08x" % (sC, f2u(CLOG)))
e("s_mov_b32 s%d, 0x%08x" % (sTraw, f2u(TLOG2 / CLOG)))
L = vLane
e("v_and_b32 v%d, 31, v%d" % (vT0, L))
e("v_lshrrev_b32 v%d, 5, v%d" % (vT1, L))
e("v_and_b32 v%d, 15, v%d" % (vT2, L))
e("v_xor_b32 v%d, v%d, v%d" % (vT2, vT2, vT1))
e("v_lshlrev_b32 v%d, 4, v%d" % (vT2, vT2))
e("v_lshl_add_u32 v%d, v%d, 8, v%d" % (vT2, vT0, vT2))
for s in range(8):
    e("v_xor_b32 v%d, %d, v%d" % (vKrd + s, s * 32, vT2))
    e("v_add_u32 v%d, s%d, v%d" % (vKrd + s, sLds, vKrd + s))
e("v_lshrrev_b32 v%d, 2, v%d" % (vT0, L)); e("v_and_b32 v%d, 3, v%d" % (vT0, vT0))
e("v_and_b32 v%d, 3, v%d" % (vT2, L))
e("v_lshrrev_b32 v%d, 4, v%d" % (vT3, L)); e("v_and_b32 v%d, 1, v%d" % (vT3, vT3))
tA, tB, tC = vTmp, vTmp + 1, vTmp + 2
e("v_lshl_add_u32 v%d, v%d, 2, v%d" % (tA, vT1, vT0))
e("v_lshlrev_b32 v%d, 8, v%d" % (tA, tA))
e("v_lshl_add_u32 v%d, v%d, 5, v%d" % (tA, vT3, tA))
e("v_lshl_add_u32 v%d, v%d, 3, v%d" % (tA, vT2, tA))
e("v_add_u32 v%d, s%d, v%d" % (tA, sLds, tA))
for t in range(4):
    e("v_xor_b32 v%d, %d, v%d" % (tB, t, vT0))
    e("v_lshl_add_u32 v%d, v%d, 6, v%d" % (vTrV + t, tB, tA))
e("v_lshl_add_u32 v%d, v%d, 3, v%d" % (tA, vT1, vT0))
e("v_lshlrev_b32 v%d, 8, v%d" % (tA, tA))
e("v_lshl_add_u32 v%d, v%d, 5, v%d" % (tA, vT3, tA))
e("v_lshrrev_b32 v%d, 1, v%d" % (tB, vT2))
e("v_and_b32 v%d, 1, v%d" % (tC, vT2))
e("v_lshl_add_u32 v%d, v%d, 1, v%d" % (tB, tC, tB))
e("v_lshl_add_u32 v%d, v%d, 3, v%d" % (tA, tB, tA))
e("v_add_u32 v%d, s%d, v%d" % (tA, sLds, tA))
for t in range(4):
    e("v_xor_b32 v%d, %d, v%d" % (tB, t, vT0))
    e("v_lshl_add_u32 v%d, v%d, 6, v%d" % (vTrQ + t, tB, tA))
e("v_lshrrev_b32 v%d, 4, v%d" % (vT0, L))
e("v_and_b32 v%d, 15, v%d" % (vT2, L))
for i in range(4):
    e("v_add_u32 v%d, %d, v%d" % (tA, 4 * i, vT0))
    e("v_xor_b32 v%d, v%d, v%d" % (tA, tA, vT2))
    e("v_lshlrev_b32 v%d, 4, v%d" % (tA, tA))
    e("v_lshl_add_u32 v%d, v%d, 8, v%d" % (vDmaK + i, vT0, tA))
e("v_lshlrev_b32 v%d, 2, v%d" % (tA, vT0))
e("v_xor_b32 v%d, v%d, v%d" % (tA, tA, vT2))
e("v_lshlrev_b32 v%d, 4, v%d" % (tA, tA))
e("v_lshl_add_u32 v%d, v%d, 8, v%d" % (vDmaV, vT0, tA))
e("v_lshl_add_u32 v%d, v%d, 13, v%d" % (vDmaWq, vT0, tA))
e("v_lshl_add_u32 v%d, v%d, 10, v%d" % (vDmaWo, vT0, tA))
e("v_and_b32 v%d, 31, v%d" % (tA, L))
e("v_lshlrev_b32 v%d, 10, v%d" % (tA, tA))
e("v_lshl_add_u32 v%d, v%d, 4, v%d" % (vX, vT1, tA))
e("v_lshlrev_b32 v%d, 4, v%d" % (vEx, L))
e("v_add_u32 v%d, s%d, v%d" % (vExW, sLds, vEx))
e("v_add_u32 v%d, %d, v%d" % (vExW, SLOT_E0, vExW))
e("s_waitcnt lgkmcnt(0)")
e("s_cmp_eq_u32 s%d, 0" % sP)
for srd, a, b, size in ((sX, 36, 46, 32 * 64 * 512 * 2), (sK, 38, 48, 1 << 27), (sV, 40, 50, 1 << 27),
                        (sWq, 42, 52, 512 * 4096 * 2), (sWo, 44, 54, 4096 * 512 * 2)):
    e("s_cselect_b32 s%d, s%d, s%d" % (srd, a, b))
    e("s_cselect_b32 s%d, s%d, s%d" % (srd + 1, a + 1, b + 1))
    e("s_mov_b32 s%d, 0x%x" % (srd + 2, size))
    e("s_mov_b32 s%d, 0x20000" % (srd + 3))
e("s_mov_b32 s%d, s56" % sWs); e("s_mov_b32 s%d, s57" % (sWs + 1))
e("s_mov_b32 s%d, 0x%x" % (sWs + 2, 64 * 4 * 131072)); e("s_mov_b32 s%d, 0x20000" % (sWs + 3))
e("s_lshl_b32 s%d, s%d, 3" % (sT0, sG)); e("s_lshl_b32 s%d, s%d, 1" % (sT1, sWave)); e("s_add_u32 s%d, s%d, s%d" % (sT0, sT0, sT1))
e("s_lshl_b32 s%d, s%d, 8" % (sWoff, sT0))
e("s_lshl_b32 s%d, s%d, 5" % (sT1, sB)); e("s_add_u32 s%d, s%d, s%d" % (sT1, sT1, sT0))
e("s_lshl_b32 s%d, s%d, 17" % (sKoff, sT1)); e("s_mov_b32 s%d, s%d" % (sVoff, sKoff))
e("s_lshl_b32 s%d, s%d, 16" % (sXoff, sB))
e("s_lshl_b32 s%d, s%d, 20" % (sWoBase, sG)); e("s_lshl_b32 s%d, s%d, 8" % (sT1, sWave)); e("s_add_u32 s%d, s%d, s%d" % (sWoBase, sWoBase, sT1))
e("s_mov_b32 s%d, 0" % sTile); e("s_mov_b32 s%d, 0" % sTileC)
e("s_lshl_b32 s%d, s%d, 5" % (sT0, sP)); e("s_add_u32 s%d, s%d, s%d" % (sT0, sT0, sB))
e("s_lshl_b32 s%d, s%d, 2" % (sT0, sT0)); e("s_add_u32 s%d, s%d, s%d" % (sT0, sT0, sG))
e("s_lshl_b32 s%d, s%d, 2" % (sT0, sT0)); e("s_add_u32 s%d, s%d, s%d" % (sT0, sT0, sWave))
e("s_lshl_b32 s%d, s%d, 15" % (sOutOff, sT0))

ring0 = [SLOT_W, SLOT_E0, SLOT_E1]
xb0 = [vBf, vS, vS + 16]
for t in range(3):
    dma_wq(ring0[t], xb0[t], "W%d" % t)
dma_kv("K", SLOT_K, "K")
dma_kv("V", SLOT_V, "V")
zero_q()
init_head()
g.cut()
for t in range(16):
    g.wait_vm("W%d" % (t % 3))
    xb = xb0[t % 3]
    tr_stage(ring0[t % 3], "Q", aQ, lambda u, qt: xb + (u * 2 + qt) * 4)
    if t + 3 < 16:
        dma_wq(ring0[t % 3], xb0[t % 3], "W%d" % (t % 3))
    if t % 3 == 2:
        g.cut("iter")
g.cut()
e("s_sub_u32 s%d, s%d, %d" % (sWoff, sWoff, 16 * 262144 - 256))
e("s_sub_u32 s%d, s%d, %d" % (sXoff, sXoff, 16 * 64))
dma_wq(SLOT_W, vBf, "W")
q_convert()
zero_q()
g.cut()

bf = lambda u, qt: vBf + (u * 2 + qt) * 4
pf = lambda u, qt: vP + (qt * 2 + u) * 4
for c in range(16):
    g.wait_vm("K")
    s_stage()
    dma_kv("K", SLOT_K, "K")
    softmax()
    g.wait_vm("V")
    tr_stage(SLOT_V, "V", aO, pf)
    dma_kv("V", SLOT_V, "V")
    g.wait_vm("W")
    tr_stage(SLOT_W, "Q", aQ, bf)
    if c < 15:
        dma_wq(SLOT_W, vBf, "W")
    else:
        dma_wo(SLOT_W, "W")
    g.cut("iter")
finalize_head()
q_convert()
zero_q()
init_head()
e("s_barrier")
g.cut()
for c in range(16):
    g.wait_vm("K")
    s_stage()
    if c < 15:
        dma_kv("K", SLOT_K, "K")
    else:
        e("s_add_u32 s%d, s%d, 131072" % (sWoBase, sWoBase))
        e("s_mov_b32 s%d, 0" % sTile)
        dma_wo(SLOT_K, "T0")
    softmax()
    g.wait_vm("V")
    tr_stage(SLOT_V, "V", aO, pf)
    if c < 15:
        dma_kv("V", SLOT_V, "V")
    else:
        dma_wo(SLOT_V, "T1")
    ex_read()
    g.wait_vm("W")
    g.wait_lg("b")
    tr_stage(SLOT_W, "V", aQ, bf)
    if c < 15:
        dma_wo(SLOT_W, "W")
    else:
        dma_wo(SLOT_W, "T2")
    g.cut("iter")
e("s_barrier")
finalize_head()
e("s_barrier")
e("s_mov_b32 s%d, 0" % sTileC)
g.cut()
ring3 = [SLOT_K, SLOT_V, SLOT_W]
for t in range(16):
    ex_read()
    g.wait_vm("T%d" % (t % 3))
    g.wait_lg("b")
    tr_stage(ring3[t % 3], "V", aQ, bf)
    if t + 3 < 16:
        dma_wo(ring3[t % 3], "T%d" % (t % 3))
    if t % 3 == 2:
        g.cut("iter")
g.cut()
e("s_nop 7"); e("s_nop 7")
for f in range(32):
    if f % 4 == 0:
        e("s_add_u32 s%d, s%d, %d" % (sT0, sOutOff, f * 1024))
    g.vmem("buffer_store_dwordx4 %s, v%d, s[%d:%d], s%d offen offset:%d" % (ar(aQ + f * 4, 4), vEx, sWs, sWs + 3, sT0, (f % 4) * 1024), "st")
g.wait_vm_all()
e("L_end:")
e("s_endpgm")
body = g.render(sCnt)
for u in g.uses:
    body += rare_path(u)

r = []
a = r.append
a(".globl " + RN); a(".p2align 8"); a(".type %s,@function" % RN); a(RN + ":")
a("s_cmp_ge_u32 s2, 512"); a("s_cbranch_scc1 L_rend")
a("s_load_dwordx2 s[4:5], s[0:1], 80")
a("s_load_dwordx2 s[6:7], s[0:1], 96")
a("v_lshrrev_b32 v1, 6, v0"); a("v_and_b32 v2, 63, v0")
a("s_nop 0")
a("v_readfirstlane_b32 s3, v1")
a("s_lshl_b32 s16, s2, 2"); a("s_add_u32 s16, s16, s3")
a("s_lshr_b32 s17, s16, 5")
a("s_and_b32 s18, s16, 31")
a("s_lshr_b32 s19, s18, 3")
a("s_and_b32 s20, s18, 7")
a("s_lshl_b32 s21, s17, 19"); a("s_lshl_b32 s22, s19, 15"); a("s_add_u32 s21, s21, s22")
a("s_lshl_b32 s22, s20, 12"); a("s_add_u32 s21, s21, s22")
a("v_lshlrev_b32 v3, 4, v2")
a("s_waitcnt lgkmcnt(0)")
a("s_mov_b32 s8, s6"); a("s_mov_b32 s9, s7"); a("s_mov_b32 s10, 0x%x" % (64 * 4 * 131072)); a("s_mov_b32 s11, 0x20000")
a("s_mov_b32 s12, s4"); a("s_mov_b32 s13, s5"); a("s_mov_b32 s14, 0x%x" % (32 * 64 * 1024 * 2)); a("s_mov_b32 s15, 0x20000")
for gg in range(4):
    a("s_add_u32 s22, s21, %d" % (gg * 131072))
    for q in range(4):
        a("buffer_load_dwordx4 v[%d:%d], v3, s[8:11], s22 offen offset:%d" % (16 + gg * 16 + q * 4, 16 + gg * 16 + q * 4 + 3, q * 1024))
a("s_and_b32 s23, s17, 31")
a("s_lshr_b32 s24, s17, 5")
a("s_and_b32 s25, s20, 1")
a("s_lshr_b32 s26, s20, 1")
a("s_lshl_b32 s27, s23, 17")
a("s_lshl_b32 s28, s25, 16"); a("s_add_u32 s27, s27, s28")
a("s_lshl_b32 s28, s24, 10"); a("s_add_u32 s27, s27, s28")
a("s_lshl_b32 s28, s19, 8"); a("s_add_u32 s27, s27, s28")
a("s_lshl_b32 s28, s26, 6"); a("s_add_u32 s27, s27, s28")
a("v_and_b32 v4, 31, v2"); a("v_lshlrev_b32 v4, 11, v4")
a("v_lshrrev_b32 v5, 5, v2"); a("v_lshl_add_u32 v4, v5, 4, v4")
a("s_waitcnt vmcnt(8)")
for i in range(16):
    a("v_add_f32 v%d, v%d, v%d" % (16 + i, 16 + i, 32 + i))
a("s_waitcnt vmcnt(0)")
for i in range(16):
    a("v_add_f32 v%d, v%d, v%d" % (48 + i, 48 + i, 64 + i))
for i in range(16):
    a("v_add_f32 v%d, v%d, v%d" % (16 + i, 16 + i, 48 + i))
for pair in range(2):
    d = 80 + pair * 4
    s0 = 16 + pair * 8
    a("v_cvt_pk_bf16_f32 v%d, v%d, v%d" % (d, s0, s0 + 1))
    a("v_cvt_pk_bf16_f32 v%d, v%d, v%d" % (d + 1, s0 + 2, s0 + 3))
    a("v_cvt_pk_bf16_f32 v%d, v%d, v%d" % (d + 2, s0 + 4, s0 + 5))
    a("v_cvt_pk_bf16_f32 v%d, v%d, v%d" % (d + 3, s0 + 6, s0 + 7))
a("s_nop 1")
for pair in range(2):
    d = 80 + pair * 4
    a("v_permlane32_swap_b32 v%d, v%d" % (d, d + 2))
    a("v_permlane32_swap_b32 v%d, v%d" % (d + 1, d + 3))
a("s_nop 1")
for pair in range(2):
    d = 80 + pair * 4
    a("buffer_store_dwordx4 v[%d:%d], v4, s[12:15], s27 offen offset:%d" % (d, d + 3, pair * 32))
a("s_waitcnt vmcnt(0)")
a("L_rend:")
a("s_endpgm")

tail = []
t = tail.append
t('.section .rodata,"a"')
for name, nv, acc in ((KN, 512, 256), (RN, 96, 96)):
    t(".p2align 6"); t(".amdhsa_kernel " + name)
    t("  .amdhsa_next_free_vgpr %d" % nv); t("  .amdhsa_next_free_sgpr 102"); t("  .amdhsa_accum_offset %d" % acc)
    t("  .amdhsa_group_segment_fixed_size 0"); t("  .amdhsa_kernarg_size 104"); t("  .amdhsa_user_sgpr_count 2")
    t("  .amdhsa_user_sgpr_kernarg_segment_ptr 1"); t("  .amdhsa_system_sgpr_workgroup_id_x 1"); t(".end_amdhsa_kernel")

open(sys.argv[1], "w").write("\n".join(hdr + body + r + tail) + "\n")
```

```python
import sys, struct, math

KN = "concat_heads__mha_block_cached__mha_block_cached__near_ridge_kernel"
RN = "mha_reduce_kernel"

def f2u(x):
    return struct.unpack("<I", struct.pack("<f", x))[0]

class Em:
    def __init__(self):
        self.blocks = []
        self.cur = []
        self.vm = []
        self.lg = []
        self.nlabel = 0
    def e(self, s):
        self.cur.append(s)
    def vmem(self, s, tag):
        self.cur.append(s); self.vm.append(tag)
    def lds(self, s, tag="x"):
        self.cur.append(s); self.lg.append(tag)
        assert len(self.lg) <= 15, "too many lds outstanding"
    def wait_vm(self, tag):
        idxs = [i for i, t in enumerate(self.vm) if t == tag]
        if not idxs:
            return
        idx = max(idxs)
        n = len(self.vm) - 1 - idx
        assert n <= 63
        self.cur.append("s_waitcnt vmcnt(%d)" % n)
        self.vm = self.vm[idx + 1:]
    def wait_vm_all(self):
        self.cur.append("s_waitcnt vmcnt(0)"); self.vm = []
    def wait_lg(self, tag):
        idxs = [i for i, t in enumerate(self.lg) if t == tag]
        if not idxs:
            return
        idx = max(idxs)
        n = len(self.lg) - 1 - idx
        self.cur.append("s_waitcnt lgkmcnt(%d)" % n)
        self.lg = self.lg[idx + 1:]
    def wait_lg_all(self):
        self.cur.append("s_waitcnt lgkmcnt(0)"); self.lg = []
    def cut(self, kind="seq"):
        if self.cur:
            self.blocks.append((kind, self.cur))
        self.cur = []
    def render(self, cnt_sgpr):
        self.cut()
        out = []
        i = 0
        B = self.blocks
        while i < len(B):
            kind, txt = B[i]
            j = i + 1
            if kind == "iter":
                while j < len(B) and B[j][0] == "iter" and B[j][1] == txt:
                    j += 1
            n = j - i
            if n > 1:
                self.nlabel += 1
                lab = "L_loop%d" % self.nlabel
                out.append("s_mov_b32 s%d, %d" % (cnt_sgpr, n))
                out.append(".p2align 3")
                out.append(lab + ":")
                out += [t.replace("@U@", "l%d" % self.nlabel) for t in txt]
                out.append("s_sub_u32 s%d, s%d, 1" % (cnt_sgpr, cnt_sgpr))
                out.append("s_cmp_lg_u32 s%d, 0" % cnt_sgpr)
                out.append("s_cbranch_scc1 " + lab)
                self.uses.append("l%d" % self.nlabel) if any("@U@" in t for t in txt) else None
            else:
                self.nlabel += 1
                out += [t.replace("@U@", "l%d" % self.nlabel) for t in txt]
                self.uses.append("l%d" % self.nlabel) if any("@U@" in t for t in txt) else None
            i = j
        return out

sK, sV, sWq, sWo, sX, sWs = 4, 8, 12, 16, 20, 24
sWave, sB, sP, sG = 28, 29, 30, 31
sLds = 32
sKoff, sVoff = 33, 34
sWoff = 35
sXoff = 58
sT0, sT1, sT2 = 59, 60, 61
sC = 62
sCnt = 63
sTile = 64
sTileC = 65
sWoBase = 66
sTraw = 67
sOutOff = 68
vLane = 1
vKrd = 2
vTrV = 10
vTrQ = 14
vDmaK = 18
vDmaV = 22
vDmaWq = 23
vDmaWo = 24
vX = 38
vL128 = 25
vDum = 37
vEx = 26
vExR = 27
vExW = 28
vM = 29
vThr = 30
vMc0, vMc1 = 31, 32
vT0, vT1, vT2, vT3 = 33, 34, 35, 36
vL = 40
vQf = 48
vS = 112
vP = 144
vA = 160
vBf = 224
vTmp = 240
aO = 0
aQ = 128

SLOT_K, SLOT_V, SLOT_W, SLOT_E0, SLOT_E1 = 0, 8192, 16384, 24576, 32768
WAVE_LDS = 40960

SCALE = 128 ** -0.5
CLOG = SCALE * math.log2(math.e)
TLOG2 = 10.0

def vr(b, n=4): return "v[%d:%d]" % (b, b + n - 1)
def ar(b, n=16): return "a[%d:%d]" % (b, b + n - 1)

g = Em()
g.uses = []
e = g.e
import os
INSTR = int(os.environ.get("INSTR", "0"))
NOREDUCE = int(os.environ.get("NOREDUCE", "0"))
WPOL = os.environ.get("WPOL", "")
SPOL = os.environ.get("SPOL", " sc1")
LPOL = os.environ.get("LPOL", " sc1")
ROT = int(os.environ.get("ROT", "1"))
WARM = int(os.environ.get("WARM", "0"))
sRot = 69
sTq = 54
nstamp = [0]
def stamp():
    if not INSTR: return
    if nstamp[0] >= 16: return
    k = nstamp[0]; nstamp[0] += 1
    e("%s s[%d:%d]" % ("s_memtime" if os.environ.get("CYC") else "s_memrealtime", 70 + 2 * k, 71 + 2 * k))
    e("s_waitcnt lgkmcnt(0)")

sD0, sD1, sD2 = 55, 56, 57
def emit_groups(groups):
    for G in groups:
        emit_group(G)
def emit_group(G):
    for kind, txt, tag in G:
        if kind == "e": e(txt)
        else: g.vmem(txt, tag)

def dma_kv_g(kind, slot, tag):
    srd = sK if kind == "K" else sV
    off = sKoff if kind == "K" else sVoff
    out = []
    for i in range(8):
        G = []
        if i % 4 == 0:
            G.append(("e", "s_add_u32 m0, s%d, %d" % (sLds, slot + (i // 4) * 4096), None))
            G.append(("e", "s_add_u32 s%d, s%d, %d" % (sD0, off, (i // 4) * 4096), None))
        vo = vDmaK + (i & 3) if kind == "K" else vDmaV
        G.append(("v", "buffer_load_dwordx4 v%d, s[%d:%d], s%d offen offset:%d nt lds" % (vo, srd, srd + 3, sD0, (i & 3) * 1024), tag))
        if i == 7:
            G.append(("e", "s_add_u32 s%d, s%d, 8192" % (off, off), None))
        out.append(G)
    return out

def dma_wq_g(slot, tag):
    out = []
    for i in range(8):
        G = []
        if i == 0:
            G.append(("e", "s_add_u32 s%d, s%d, s%d" % (sD1, sTq, sRot), None))
            G.append(("e", "s_and_b32 s%d, s%d, 15" % (sD1, sD1), None))
            G.append(("e", "s_lshl_b32 s%d, s%d, 18" % (sD1, sD1), None))
            G.append(("e", "s_add_u32 s%d, s%d, s%d" % (sD1, sD1, sWoff), None))
            G.append(("e", "s_add_u32 s%d, s%d, 1" % (sTq, sTq), None))
        if i % 4 == 0:
            G.append(("e", "s_add_u32 m0, s%d, %d" % (sLds, slot + (i // 4) * 4096), None))
        G.append(("e", "s_add_u32 s%d, s%d, %d" % (sD0, sD1, i * 32768 - (i & 3) * 1024), None))
        G.append(("v", "buffer_load_dwordx4 v%d, s[%d:%d], s%d offen offset:%d%s lds" % (vDmaWq, sWq, sWq + 3, sD0, (i & 3) * 1024, WPOL), tag))
        out.append(G)
    return out

def dma_wo_g(slot, tag):
    out = []
    for i in range(8):
        G = []
        if i == 0:
            G.append(("e", "s_add_u32 s%d, s%d, s%d" % (sD2, sTile, sRot), None))
            G.append(("e", "s_and_b32 s%d, s%d, 15" % (sD2, sD2), None))
            G.append(("e", "s_lshr_b32 s%d, s%d, 2" % (sD1, sD2), None))
            G.append(("e", "s_lshl_b32 s%d, s%d, 18" % (sD1, sD1), None))
            G.append(("e", "s_and_b32 s%d, s%d, 3" % (sD2, sD2), None))
            G.append(("e", "s_lshl_b32 s%d, s%d, 15" % (sD2, sD2), None))
            G.append(("e", "s_add_u32 s%d, s%d, s%d" % (sD1, sD1, sD2), None))
            G.append(("e", "s_add_u32 s%d, s%d, s%d" % (sD1, sD1, sWoBase), None))
            G.append(("e", "s_add_u32 s%d, s%d, 1" % (sTile, sTile), None))
        if i % 4 == 0:
            G.append(("e", "s_add_u32 m0, s%d, %d" % (sLds, slot + (i // 4) * 4096), None))
        G.append(("e", "s_add_u32 s%d, s%d, %d" % (sD0, sD1, i * 4096 - (i & 3) * 1024), None))
        G.append(("v", "buffer_load_dwordx4 v%d, s[%d:%d], s%d offen offset:%d%s lds" % (vDmaWo, sWo, sWo + 3, sD0, (i & 3) * 1024, WPOL), tag))
        out.append(G)
    return out

def dma_kv(kind, slot, tag): emit_groups(dma_kv_g(kind, slot, tag))
def dma_wq(slot, tag): emit_groups(dma_wq_g(slot, tag))
def dma_wo(slot, tag): emit_groups(dma_wo_g(slot, tag))

def pipelined(frags, depth):
    n = len(frags)
    for f in range(min(depth, n)):
        for r in frags[f][0]:
            g.lds(r, "f%d" % f)
    for f in range(n):
        g.wait_lg("f%d" % f)
        for m in frags[f][1]:
            e(m)
        if f + depth < n:
            for r in frags[f + depth][0]:
                g.lds(r, "f%d" % (f + depth))

def tr_stage(slot, pattern, acc, bfrag, first=False):
    frags = []
    base = vTrV if pattern == "V" else vTrQ
    second = 2048 if pattern == "V" else 1024
    k = 0
    for u in range(2):
        for t in range(4):
            a = vA + (k % 16) * 4
            k += 1
            reads = ["ds_read_b64_tr_b16 v[%d:%d], v%d offset:%d" % (a, a + 1, base + t, slot + u * 4096),
                     "ds_read_b64_tr_b16 v[%d:%d], v%d offset:%d" % (a + 2, a + 3, base + t, slot + u * 4096 + second)]
            mf = []
            for qt in range(2):
                d = ar(acc + (t * 2 + qt) * 16)
                mf.append("v_mfma_f32_32x32x16_bf16 %s, %s, %s, %s" % (d, vr(a), vr(bfrag(u, qt)), "0" if (first and u == 0) else d))
            frags.append((reads, mf))
    pipelined(frags, 6)

def stream_tiles(tiles, cut_every=None):
    units = []
    k = 0
    for ti, T in enumerate(tiles):
        base = vTrV if T["pattern"] == "V" else vTrQ
        second = 2048 if T["pattern"] == "V" else 1024
        for u in range(2):
            for t in range(4):
                a = vA + (k % 16) * 4
                k += 1
                reads = ["ds_read_b64_tr_b16 v[%d:%d], v%d offset:%d" % (a, a + 1, base + t, T["slot"] + u * 4096),
                         "ds_read_b64_tr_b16 v[%d:%d], v%d offset:%d" % (a + 2, a + 3, base + t, T["slot"] + u * 4096 + second)]
                mf = []
                for qt in range(2):
                    d = ar(T["acc"] + (t * 2 + qt) * 16)
                    mf.append("v_mfma_f32_32x32x16_bf16 %s, %s, %s, %s" % (d, vr(a), vr(T["bbuf"] + (u * 2 + qt) * 4), "0" if (T.get("first") and u == 0) else d))
                units.append(dict(reads=reads, mf=mf, tile=ti, idx=u * 4 + t))
    n = len(units)
    nxt = 0
    def try_issue(limit_unit):
        nonlocal nxt
        while nxt < n and nxt <= limit_unit:
            U = units[nxt]
            need = len(U["reads"]) + (4 if U["idx"] == 0 else 0)
            if len(g.lg) + need > 14:
                break
            if U["idx"] == 0:
                T = tiles[U["tile"]]
                T["pre"](T["bbuf"], "u%d" % nxt)
                g.wait_vm(T["vmtag"])
            for r in U["reads"]:
                g.lds(r, "u%d" % nxt)
            nxt += 1
    LOOK = 6
    pend = []
    try_issue(LOOK - 1)
    for f in range(n):
        U = units[f]
        assert nxt > f
        g.wait_lg("u%d" % f)
        e(U["mf"][0])
        try_issue(f + LOOK)
        e(U["mf"][1])
        if U["idx"] == 7:
            pend += tiles[U["tile"]]["post"]()
        if pend:
            emit_group(pend.pop(0))
        if U["idx"] == 7:
            if cut_every and (U["tile"] + 1) % cut_every == 0:
                g.cut("iter")
    emit_groups(pend)

def s_stage():
    frags = []
    for s in range(8):
        a = vA + 32 + s * 4
        reads = ["ds_read_b128 %s, v%d offset:%d" % (vr(a), vKrd + s, SLOT_K)]
        mf = []
        for qt in range(2):
            d = vr(vS + qt * 16, 16)
            mf.append("v_mfma_f32_32x32x16_bf16 %s, %s, %s, %s" % (d, vr(a), vr(vQf + (s * 2 + qt) * 4), d if s else "0"))
        frags.append((reads, mf))
    pipelined(frags, 8)

def softmax(first=False):
    e("s_nop 7"); e("s_nop 7")
    for qt, t in ((0, vT0), (1, vT1)):
        pass
    S = lambda qt, i: vS + qt * 16 + i
    e("v_max3_f32 v%d, v%d, v%d, v%d" % (vT0, S(0, 0), S(0, 1), S(0, 2)))
    e("v_max3_f32 v%d, v%d, v%d, v%d" % (vT1, S(1, 0), S(1, 1), S(1, 2)))
    for i in range(3, 15, 2):
        e("v_max3_f32 v%d, v%d, v%d, v%d" % (vT0, vT0, S(0, i), S(0, i + 1)))
        e("v_max3_f32 v%d, v%d, v%d, v%d" % (vT1, vT1, S(1, i), S(1, i + 1)))
    e("v_max_f32 v%d, v%d, v%d" % (vT0, vT0, S(0, 15)))
    e("v_max_f32 v%d, v%d, v%d" % (vT1, vT1, S(1, 15)))
    e("s_nop 1")
    e("v_permlane32_swap_b32 v%d, v%d" % (vT0, vT1))
    e("s_nop 1")
    e("v_max_f32 v%d, v%d, v%d" % (vT2, vT0, vT1))
    if first:
        e("v_mov_b32 v%d, v%d" % (vM, vT2))
        e("v_add_f32 v%d, s%d, v%d" % (vThr, sTraw, vT2))
        e("v_mul_f32 v%d, s%d, v%d" % (vMc0, sC, vT2))
        e("v_mul_f32 v%d, s%d, v%d" % (vMc1, sC, vT2))
        for i in range(8):
            e("v_mov_b32 v%d, 0" % (vL + i))
        e("v_permlane32_swap_b32 v%d, v%d" % (vMc0, vMc1))
        e("s_nop 1")
    else:
        e("v_cmp_gt_f32 vcc, v%d, v%d" % (vT2, vThr))
        e("s_nop 4")
        e("s_cbranch_vccnz L_rare_@U@")
        e("L_back_@U@:")
    for i in range(16):
        for qt in range(2):
            e("v_fma_f32 v%d, v%d, s%d, -v%d" % (S(qt, i), S(qt, i), sC, vMc0 + qt))
    for i in range(16):
        for qt in range(2):
            e("v_exp_f32 v%d, v%d" % (S(qt, i), S(qt, i)))
    e("s_nop 0")
    for i in range(16):
        for qt in range(2):
            e("v_add_f32 v%d, v%d, v%d" % (vL + qt * 4 + (i & 3), vL + qt * 4 + (i & 3), S(qt, i)))
    for qt in range(2):
        for u in range(2):
            for k in range(4):
                e("v_cvt_pk_bf16_f32 v%d, v%d, v%d" % (vP + (qt * 2 + u) * 4 + k, S(qt, 8 * u + 2 * k), S(qt, 8 * u + 2 * k + 1)))

def rare_path(u):
    o = []
    a = o.append
    a("L_rare_%s:" % u)
    a("v_max_f32 v%d, v%d, v%d" % (vT2, vT2, vM))
    a("v_sub_f32 v%d, v%d, v%d" % (vT0, vM, vT2))
    a("v_mul_f32 v%d, s%d, v%d" % (vT0, sC, vT0))
    a("v_exp_f32 v%d, v%d" % (vT0, vT0))
    a("v_mov_b32 v%d, v%d" % (vM, vT2))
    a("v_add_f32 v%d, s%d, v%d" % (vThr, sTraw, vT2))
    a("v_mul_f32 v%d, s%d, v%d" % (vMc0, sC, vT2))
    a("v_mov_b32 v%d, v%d" % (vT1, vT0))
    a("v_mov_b32 v%d, v%d" % (vMc1, vMc0))
    a("s_nop 1")
    a("v_permlane32_swap_b32 v%d, v%d" % (vT0, vT1))
    a("v_permlane32_swap_b32 v%d, v%d" % (vMc0, vMc1))
    a("s_nop 1")
    for qt in range(2):
        for k in range(4):
            a("v_mul_f32 v%d, v%d, v%d" % (vL + qt * 4 + k, vL + qt * 4 + k, vT0 + qt))
    for t in range(4):
        for qt in range(2):
            b = aO + (t * 2 + qt) * 16
            for i in range(16):
                a("v_accvgpr_read_b32 v%d, a%d" % (vTmp + i, b + i))
            for i in range(16):
                a("v_mul_f32 v%d, v%d, v%d" % (vTmp + i, vTmp + i, vT0 + qt))
            for i in range(16):
                a("v_accvgpr_write_b32 a%d, v%d" % (b + i, vTmp + i))
    a("s_nop 1")
    a("s_branch L_back_%s" % u)
    return o

def init_head():
    for i in range(128):
        e("v_accvgpr_write_b32 a%d, 0" % (aO + i))
    for i in range(8):
        e("v_mov_b32 v%d, 0" % (vL + i))
    e("v_mov_b32 v%d, 0x%08x" % (vM, f2u(-1e30)))
    e("v_mov_b32 v%d, 0x%08x" % (vThr, f2u(-1e30)))
    e("v_mov_b32 v%d, 0" % vMc0)
    e("v_mov_b32 v%d, 0" % vMc1)

def zero_q():
    for i in range(128):
        e("v_accvgpr_write_b32 a%d, 0" % (aQ + i))

def q_convert():
    e("s_nop 7"); e("s_nop 7")
    for t in range(4):
        for qt in range(2):
            b = aQ + (t * 2 + qt) * 16
            for i in range(16):
                e("v_accvgpr_read_b32 v%d, a%d" % (vTmp + i, b + i))
            for u in range(2):
                for k in range(4):
                    e("v_cvt_pk_bf16_f32 v%d, v%d, v%d" % (vQf + ((2 * t + u) * 2 + qt) * 4 + k, vTmp + 8 * u + 2 * k, vTmp + 8 * u + 2 * k + 1))

def finalize_head():
    e("s_nop 7"); e("s_nop 7")
    for qt in range(2):
        e("v_add_f32 v%d, v%d, v%d" % (vL + qt * 4, vL + qt * 4, vL + qt * 4 + 1))
        e("v_add_f32 v%d, v%d, v%d" % (vL + qt * 4 + 2, vL + qt * 4 + 2, vL + qt * 4 + 3))
    for qt in range(2):
        e("v_add_f32 v%d, v%d, v%d" % (vT0 + qt, vL + qt * 4, vL + qt * 4 + 2))
    e("s_nop 1")
    e("v_permlane32_swap_b32 v%d, v%d" % (vT0, vT1))
    e("s_nop 1")
    e("v_add_f32 v%d, v%d, v%d" % (vT0, vT0, vT1))
    e("v_rcp_f32 v%d, v%d" % (vT0, vT0))
    e("s_nop 1")
    e("v_mov_b32 v%d, v%d" % (vT1, vT0))
    e("s_nop 1")
    e("v_permlane32_swap_b32 v%d, v%d" % (vT0, vT1))
    e("s_nop 1")
    for t in range(4):
        for qt in range(2):
            b = aO + (t * 2 + qt) * 16
            for i in range(16):
                e("v_accvgpr_read_b32 v%d, a%d" % (vTmp + i, b + i))
            for i in range(16):
                e("v_mul_f32 v%d, v%d, v%d" % (vTmp + i, vTmp + i, vT0 + qt))
            pk = vA + ((t * 2 + qt) % 4) * 8
            for k in range(8):
                e("v_cvt_pk_bf16_f32 v%d, v%d, v%d" % (pk + k, vTmp + 2 * k, vTmp + 2 * k + 1))
            for u in range(2):
                g.lds("ds_write_b128 v%d, %s offset:%d" % (vExW, vr(pk + 4 * u), ((2 * t + u) * 2 + qt) * 1024), "w")
            if (t * 2 + qt) % 4 == 3:
                g.wait_lg_all()

def ex_read(bb=None, tag='b'):
    bb = vBf if bb is None else bb
    e("s_add_u32 s%d, s%d, s%d" % (sT2, sTileC, sRot))
    e("s_and_b32 s%d, s%d, 15" % (sT2, sT2))
    e("s_lshr_b32 s%d, s%d, 2" % (sT1, sT2))
    e("s_mul_i32 s%d, s%d, %d" % (sT1, sT1, WAVE_LDS))
    e("s_and_b32 s%d, s%d, 3" % (sT2, sT2))
    e("s_lshl_b32 s%d, s%d, 12" % (sT2, sT2))
    e("s_add_u32 s%d, s%d, s%d" % (sT1, sT1, sT2))
    e("v_add_u32 v%d, s%d, v%d" % (vExR, sT1, vEx))
    e("s_add_u32 s%d, s%d, 1" % (sTileC, sTileC))
    for k in range(4):
        g.lds("ds_read_b128 %s, v%d offset:%d" % (vr(bb + 4 * k), vExR, SLOT_E0 + k * 1024), tag)

def x_read(bb=None, tag='b'):
    bb = vBf if bb is None else bb
    e("s_add_u32 s%d, s%d, s%d" % (sT2, sXoff, sRot))
    e("s_and_b32 s%d, s%d, 15" % (sT2, sT2))
    e("s_lshl_b32 s%d, s%d, 6" % (sT2, sT2))
    e("s_xor_b32 s%d, s%d, 32" % (sT1, sT2))
    for u in range(2):
        for qt in range(2):
            e("v_xor_b32 v%d, s%d, v%d" % (vT0 + u * 2 + qt, sT2 if u == 0 else sT1, vX + qt))
    for u in range(2):
        for qt in range(2):
            g.lds("ds_read_b128 %s, v%d" % (vr(bb + 4 * (u * 2 + qt)), vT0 + u * 2 + qt), tag)
    e("s_add_u32 s%d, s%d, 1" % (sXoff, sXoff))

hdr = []
h = hdr.append
h("; @launch grid=(256,1,1) block=(256,1,1) lds=163840")
h('.amdgcn_target "amdgcn-amd-amdhsa--gfx950"')
h(".text"); h(".globl " + KN); h(".p2align 8"); h(".type %s,@function" % KN); h(KN + ":")

e("s_cmp_ge_u32 s2, 256"); e("s_cbranch_scc1 L_end")
e("s_load_dwordx16 s[36:51], s[0:1], 0")
e("s_load_dwordx4 s[52:55], s[0:1], 64")
e("s_load_dwordx2 s[56:57], s[0:1], 96")
stamp()
L = vLane
tA, tB, tC = vTmp, vTmp + 1, vTmp + 2
e("v_lshrrev_b32 v%d, 6, v0" % vT0)
e("v_and_b32 v%d, 63, v0" % vLane)
e("v_lshlrev_b32 v%d, 7, v%d" % (vL128, vLane))
e("v_readfirstlane_b32 s%d, v%d" % (sWave, vT0))
e("v_lshlrev_b32 v%d, 4, v%d" % (vEx, L))
e("s_lshr_b32 s%d, s2, 3" % sB)
e("s_lshr_b32 s%d, s2, 2" % sP); e("s_and_b32 s%d, s%d, 1" % (sP, sP))
e("s_and_b32 s%d, s2, 3" % sG)
e("s_mul_i32 s%d, s%d, %d" % (sLds, sWave, WAVE_LDS))
e("s_mov_b32 s%d, 0x%08x" % (sC, f2u(CLOG)))
e("s_mov_b32 s%d, 0x%08x" % (sTraw, f2u(TLOG2 / CLOG)))
e("s_lshl_b32 s%d, s%d, 3" % (sT0, sG)); e("s_lshl_b32 s%d, s%d, 1" % (sT1, sWave)); e("s_add_u32 s%d, s%d, s%d" % (sT0, sT0, sT1))
e("s_lshl_b32 s%d, s%d, 8" % (sWoff, sT0))
e("s_lshl_b32 s%d, s%d, 5" % (sT1, sB)); e("s_add_u32 s%d, s%d, s%d" % (sT1, sT1, sT0))
e("s_lshl_b32 s%d, s%d, 17" % (sKoff, sT1)); e("s_mov_b32 s%d, s%d" % (sVoff, sKoff))
e("s_lshl_b32 s%d, s%d, 20" % (sWoBase, sG)); e("s_lshl_b32 s%d, s%d, 8" % (sT1, sWave)); e("s_add_u32 s%d, s%d, s%d" % (sWoBase, sWoBase, sT1))
e("s_mov_b32 s%d, 0" % sTile); e("s_mov_b32 s%d, 0" % sTileC)
e("s_lshl_b32 s%d, s%d, 5" % (sT0, sP)); e("s_add_u32 s%d, s%d, s%d" % (sT0, sT0, sB))
e("s_lshl_b32 s%d, s%d, 2" % (sT0, sT0)); e("s_add_u32 s%d, s%d, s%d" % (sT0, sT0, sG))
e("s_lshl_b32 s%d, s%d, 2" % (sT0, sT0)); e("s_add_u32 s%d, s%d, s%d" % (sT0, sT0, sWave))
e("s_lshl_b32 s%d, s%d, 15" % (sOutOff, sT0))
e("s_lshl_b32 s%d, s%d, 16" % (sXoff, sB)); e("s_lshl_b32 s%d, s%d, 14" % (sT0, sWave)); e("s_add_u32 s%d, s%d, s%d" % (sXoff, sXoff, sT0))
e("v_lshrrev_b32 v%d, 4, v%d" % (vT0, L))
e("v_and_b32 v%d, 15, v%d" % (vT2, L))
e("v_lshlrev_b32 v%d, 2, v%d" % (tA, vT0))
e("v_xor_b32 v%d, v%d, v%d" % (tA, tA, vT2))
e("v_lshlrev_b32 v%d, 4, v%d" % (tA, tA))
e("v_lshl_add_u32 v%d, v%d, 8, v%d" % (vDmaV, vT0, tA))
e("v_lshl_add_u32 v%d, v%d, 13, v%d" % (vDmaWq, vT0, tA))
e("v_lshl_add_u32 v%d, v%d, 10, v%d" % (vDmaWo, vT0, tA))
e("v_lshlrev_b32 v%d, 7, v%d" % (tB, vT2)); e("v_lshl_add_u32 v%d, v%d, 13, v%d" % (tB, vT0, tB))
e("s_lshl_b32 s%d, s%d, 4" % (sT2, sB)); e("s_lshl_b32 s%d, s%d, 2" % (sT1, sWave)); e("s_add_u32 s%d, s%d, s%d" % (sT2, sT2, sT1))
e("s_lshl_b32 s%d, s%d, 13" % (sT2, sT2)); e("s_lshl_b32 s%d, s%d, 11" % (sT1, sG)); e("s_add_u32 s%d, s%d, s%d" % (sT2, sT2, sT1))
e("s_waitcnt lgkmcnt(0)")
e("s_cmp_eq_u32 s%d, 0" % sP)
for srd, a, b, size in ((sX, 36, 46, 32 * 64 * 512 * 2), (sK, 38, 48, 1 << 27), (sV, 40, 50, 1 << 27),
                        (sWq, 42, 52, 512 * 4096 * 2), (sWo, 44, 54, 4096 * 512 * 2)):
    e("s_cselect_b32 s%d, s%d, s%d" % (srd, a, b))
    e("s_cselect_b32 s%d, s%d, s%d" % (srd + 1, a + 1, b + 1))
    e("s_mov_b32 s%d, 0x%x" % (srd + 2, size))
    e("s_mov_b32 s%d, 0x20000" % (srd + 3))
e("s_mov_b32 s%d, s56" % sWs); e("s_mov_b32 s%d, s57" % (sWs + 1))
e("s_mov_b32 s%d, 0x%x" % (sWs + 2, 0x4000000)); e("s_mov_b32 s%d, 0x20000" % (sWs + 3))
e("s_mov_b32 s%d, 0" % sTq)
e("s_and_b32 s%d, s%d, %d" % (sRot, sB, 15 if ROT else 0))
e("v_mov_b32 v%d, 0" % vThr)
if INSTR == 3: stamp()
if WARM: g.vmem("buffer_load_dword v%d, v%d, s[%d:%d], s%d offen%s" % (vDum, tB, sWq, sWq + 3, sT2, WPOL), "warm")
if INSTR == 3: stamp()
g.vmem("buffer_load_dword v%d, v%d, s[%d:%d], s%d offen nt" % (vDum, vThr, sK, sK + 3, sKoff), "warm")
if INSTR == 3: stamp()
g.vmem("buffer_load_dword v%d, v%d, s[%d:%d], s%d offen nt" % (vDum, vThr, sV, sV + 3, sVoff), "warm")
if INSTR == 3: stamp()
for i in range(16):
    if i % 4 == 0:
        e("s_add_u32 m0, s%d, %d" % (sLds, SLOT_E0 + i * 1024))
        e("s_add_u32 s%d, s%d, %d" % (sT0, sXoff, i * 1024))
    e("v_xor_b32 v%d, %d, v%d" % (tC, i * 16, vEx))
    g.vmem("buffer_load_dwordx4 v%d, s[%d:%d], s%d offen offset:%d nt lds" % (tC, sX, sX + 3, sT0, (i & 3) * 1024), "X")
    if INSTR == 3 and i in (0, 1, 3, 7, 15): stamp()
ring0 = [SLOT_W, SLOT_K, SLOT_V]
for t in range(3):
    dma_wq(ring0[t], "W%d" % t)
    if INSTR == 3: stamp()
g.vmem("buffer_load_dword v%d, v%d, s[%d:%d], s%d offen nt" % (vDum, vThr, sWo, sWo + 3, sWoBase), "warm")
g.vmem("buffer_load_dword v%d, v%d, s[%d:%d], s%d offen nt" % (vDum, vThr, sWs, sWs + 3, sOutOff), "warm")
stamp()
e("s_mov_b32 s%d, 0" % sXoff)
for i in range(4):
    e("v_add_u32 v%d, %d, v%d" % (tA, 4 * i, vT0))
    e("v_xor_b32 v%d, v%d, v%d" % (tA, tA, vT2))
    e("v_lshlrev_b32 v%d, 4, v%d" % (tA, tA))
    e("v_lshl_add_u32 v%d, v%d, 8, v%d" % (vDmaK + i, vT0, tA))
e("v_and_b32 v%d, 31, v%d" % (vT0, L))
e("v_lshrrev_b32 v%d, 5, v%d" % (vT1, L))
e("v_and_b32 v%d, 15, v%d" % (vT2, L))
e("v_xor_b32 v%d, v%d, v%d" % (vT3, vT2, vT1))
e("v_lshlrev_b32 v%d, 4, v%d" % (vT3, vT3))
e("v_lshrrev_b32 v%d, 4, v%d" % (tA, vT0))
e("v_mul_u32_u24 v%d, %d, v%d" % (tA, WAVE_LDS, tA))
e("v_lshl_add_u32 v%d, v%d, 10, v%d" % (tA, vT2, tA))
e("v_add_u32 v%d, v%d, v%d" % (tA, tA, vT3))
e("v_add_u32 v%d, %d, v%d" % (vX, SLOT_E0, tA))
e("v_add_u32 v%d, %d, v%d" % (vX + 1, SLOT_E0 + 2 * WAVE_LDS, tA))
e("v_lshl_add_u32 v%d, v%d, 8, v%d" % (vT2, vT0, vT3))
for s in range(8):
    e("v_xor_b32 v%d, %d, v%d" % (vKrd + s, s * 32, vT2))
    e("v_add_u32 v%d, s%d, v%d" % (vKrd + s, sLds, vKrd + s))
e("v_lshrrev_b32 v%d, 2, v%d" % (vT0, L)); e("v_and_b32 v%d, 3, v%d" % (vT0, vT0))
e("v_and_b32 v%d, 3, v%d" % (vT2, L))
e("v_lshrrev_b32 v%d, 4, v%d" % (vT3, L)); e("v_and_b32 v%d, 1, v%d" % (vT3, vT3))
e("v_lshl_add_u32 v%d, v%d, 2, v%d" % (tA, vT1, vT0))
e("v_lshlrev_b32 v%d, 8, v%d" % (tA, tA))
e("v_lshl_add_u32 v%d, v%d, 5, v%d" % (tA, vT3, tA))
e("v_lshl_add_u32 v%d, v%d, 3, v%d" % (tA, vT2, tA))
e("v_add_u32 v%d, s%d, v%d" % (tA, sLds, tA))
for t in range(4):
    e("v_xor_b32 v%d, %d, v%d" % (tB, t, vT0))
    e("v_lshl_add_u32 v%d, v%d, 6, v%d" % (vTrV + t, tB, tA))
e("v_lshl_add_u32 v%d, v%d, 3, v%d" % (tA, vT1, vT0))
e("v_lshlrev_b32 v%d, 8, v%d" % (tA, tA))
e("v_lshl_add_u32 v%d, v%d, 5, v%d" % (tA, vT3, tA))
e("v_lshrrev_b32 v%d, 1, v%d" % (tB, vT2))
e("v_and_b32 v%d, 1, v%d" % (tC, vT2))
e("v_lshl_add_u32 v%d, v%d, 1, v%d" % (tB, tC, tB))
e("v_lshl_add_u32 v%d, v%d, 3, v%d" % (tA, tB, tA))
e("v_add_u32 v%d, s%d, v%d" % (tA, sLds, tA))
for t in range(4):
    e("v_xor_b32 v%d, %d, v%d" % (tB, t, vT0))
    e("v_lshl_add_u32 v%d, v%d, 6, v%d" % (vTrQ + t, tB, tA))
e("v_add_u32 v%d, s%d, v%d" % (vExW, sLds, vEx))
e("v_add_u32 v%d, %d, v%d" % (vExW, SLOT_E0, vExW))
g.wait_vm("X")
e("s_barrier")
stamp()
g.cut()

bf = lambda u, qt: vBf + (u * 2 + qt) * 4
pf = lambda u, qt: vP + (qt * 2 + u) * 4
def post0(t):
    def f():
        if t + 3 < 16:
            return dma_wq_g(ring0[t % 3], "W%d" % (t % 3))
        elif t == 13:
            return dma_kv_g("K", SLOT_K, "K")
        elif t == 14:
            return dma_kv_g("V", SLOT_V, "V")
        else:
            G = dma_wq_g(SLOT_W, "W")
            G[0].insert(0, ("e", "s_add_u32 s%d, s%d, 256" % (sWoff, sWoff), None))
            return G
    return f
stream_tiles([dict(slot=ring0[t % 3], pattern="Q", acc=aQ, bbuf=(vBf, vP)[t % 2], pre=x_read, vmtag="W%d" % (t % 3),
                   post=post0(t), first=(t == 0)) for t in range(16)], cut_every=6)
g.cut()
q_convert()
stamp()
g.cut()

for c in range(16):
    g.wait_vm("K")
    s_stage()
    dma_kv("K", SLOT_K, "K")
    softmax(first=(c == 0))
    g.wait_vm("V")
    tr_stage(SLOT_V, "V", aO, pf, first=(c == 0))
    dma_kv("V", SLOT_V, "V")
    x_read()
    g.wait_vm("W")
    g.wait_lg("b")
    tr_stage(SLOT_W, "Q", aQ, bf, first=(c == 0))
    if c < 15:
        dma_wq(SLOT_W, "W")
    else:
        dma_wo(SLOT_W, "W")
    g.cut("iter")
stamp()
e("s_lshl_b32 s%d, s%d, 5" % (sT0, sB)); e("s_lshl_b32 s%d, s%d, 3" % (sT1, sWave)); e("s_add_u32 s%d, s%d, s%d" % (sT0, sT0, sT1))
e("s_lshl_b32 s%d, s%d, 10" % (sT0, sT0)); e("s_lshl_b32 s%d, s%d, 20" % (sT1, sG)); e("s_add_u32 s%d, s%d, s%d" % (sT0, sT0, sT1))
if WARM: g.vmem("buffer_load_dword v%d, v%d, s[%d:%d], s%d offen%s" % (vDum, vL128, sWo, sWo + 3, sT0, WPOL), "warm")
q_convert()
e("s_barrier")
finalize_head()
e("s_barrier")
stamp()
g.cut()
for c in range(16):
    g.wait_vm("K")
    s_stage()
    if c < 15:
        dma_kv("K", SLOT_K, "K")
    else:
        e("s_add_u32 s%d, s%d, 131072" % (sWoBase, sWoBase))
        e("s_mov_b32 s%d, 0" % sTile)
        dma_wo(SLOT_K, "T0")
    softmax(first=(c == 0))
    g.wait_vm("V")
    tr_stage(SLOT_V, "V", aO, pf, first=(c == 0))
    if c < 15:
        dma_kv("V", SLOT_V, "V")
    else:
        dma_wo(SLOT_V, "T1")
    ex_read()
    g.wait_vm("W")
    g.wait_lg("b")
    tr_stage(SLOT_W, "V", aQ, bf, first=(c == 0))
    if c < 15:
        dma_wo(SLOT_W, "W")
    else:
        dma_wo(SLOT_W, "T2")
    g.cut("iter")
stamp()
e("s_barrier")
finalize_head()
e("s_barrier")
e("s_mov_b32 s%d, 0" % sTileC)
stamp()
g.cut()
ring3 = [SLOT_K, SLOT_V, SLOT_W]
def post3(t):
    def f():
        if t + 3 < 16:
            return dma_wo_g(ring3[t % 3], "T%d" % (t % 3))
        return []
    return f
stream_tiles([dict(slot=ring3[t % 3], pattern="V", acc=aQ, bbuf=(vBf, vP)[t % 2], pre=ex_read, vmtag="T%d" % (t % 3),
                   post=post3(t)) for t in range(16)], cut_every=6)
g.cut()
stamp()
e("s_nop 7"); e("s_nop 7")
for f in range(32):
    if f % 4 == 0:
        e("s_add_u32 s%d, s%d, %d" % (sT0, sOutOff, f * 1024))
    g.vmem("buffer_store_dwordx4 %s, v%d, s[%d:%d], s%d offen offset:%d%s" % (ar(aQ + f * 4, 4), vEx, sWs, sWs + 3, sT0, (f % 4) * 1024, SPOL), "st")
e("s_lshl_b32 s%d, s%d, 5" % (sT0, sP)); e("s_add_u32 s%d, s%d, s%d" % (sT0, sT0, sB))
e("s_lshl_b32 s54, s%d, 2" % sT0); e("s_add_u32 s54, s54, s%d" % sWave); e("s_lshl_b32 s54, s54, 9")
e("s_add_u32 s54, s54, 0x3000000")
e("s_lshl_b32 s55, s%d, 7" % sG); e("s_add_u32 s55, s55, s54")
e("v_mov_b32 v%d, 0" % vM)
e("s_mov_b64 s[48:49], exec")
e("s_mov_b64 exec, 1")
g.vmem("buffer_store_dword v%d, v%d, s[%d:%d], s55 offen sc1" % (vM, vM, sWs, sWs + 3), "st")
e("s_mov_b64 exec, s[48:49]")
e("s_load_dwordx4 s[40:43], s[0:1], 80")
e("s_lshl_b32 s%d, s%d, 3" % (sT1, sWave))
e("s_lshl_b32 s%d, 1, s%d" % (sT2, sT1))
e("v_mov_b32 v%d, s%d" % (vT0, sT2))
e("s_lshl_b32 s%d, s%d, 5" % (sT0, sP)); e("s_add_u32 s%d, s%d, s%d" % (sT0, sT0, sB))
e("s_lshl_b32 s%d, s%d, 2" % (sT2, sT0))
e("v_mov_b32 v%d, s%d" % (vT1, sT2))
e("s_waitcnt lgkmcnt(0)")
e("s_mov_b32 s44, s42"); e("s_mov_b32 s45, s43"); e("s_mov_b32 s46, 256"); e("s_mov_b32 s47, 0x20000")
e("s_mov_b32 s42, 0x%x" % (32 * 64 * 1024 * 2)); e("s_mov_b32 s43, 0x20000")
g.wait_vm_all()
stamp()
e("s_mov_b64 exec, 1")
e("buffer_atomic_add v%d, v%d, s[44:47], 0 offen sc0 sc1" % (vT0, vT1))
e("s_waitcnt vmcnt(0)")
e("v_readfirstlane_b32 s%d, v%d" % (sT2, vT0))
e("s_lshr_b32 s%d, s%d, s%d" % (sT2, sT2, sT1))
e("s_and_b32 s%d, s%d, 7" % (sT2, sT2))
e("s_mov_b32 s38, 0")
e("s_cmp_eq_u32 s%d, 3" % sT2)
e("s_cbranch_scc1 L_last")
e("s_memrealtime s[36:37]")
e("s_waitcnt lgkmcnt(0)")
e("s_add_u32 s39, s36, 6000")
e("L_spin:")
e("s_sleep 8")
e("buffer_load_dword v%d, v%d, s[%d:%d], s55 offen sc1" % (vT0, vM, sWs, sWs + 3))
e("s_memrealtime s[36:37]")
e("s_waitcnt vmcnt(0) lgkmcnt(0)")
e("v_readfirstlane_b32 s%d, v%d" % (sT2, vT0))
e("s_cmp_eq_u32 s%d, 1" % sT2)
e("s_cbranch_scc1 L_go")
e("s_sub_u32 s37, s39, s36")
e("s_cmp_lt_i32 s37, 0")
e("s_cbranch_scc0 L_spin")
e("v_mov_b32 v%d, 2" % vT0)
e("buffer_atomic_swap v%d, v%d, s[%d:%d], s55 offen sc0 sc1" % (vT0, vM, sWs, sWs + 3))
e("s_waitcnt vmcnt(0)")
e("v_readfirstlane_b32 s%d, v%d" % (sT2, vT0))
e("s_cmp_eq_u32 s%d, 1" % sT2)
e("s_cbranch_scc1 L_go")
e("s_mov_b64 exec, s[48:49]")
e("s_branch L_fin")
e("L_last:")
e("s_mov_b64 exec, 15")
e("v_mov_b32 v%d, 1" % vT0)
e("buffer_atomic_swap v%d, v%d, s[%d:%d], s54 offen sc0 sc1" % (vT0, vL128, sWs, sWs + 3))
e("s_waitcnt vmcnt(0)")
e("v_cmp_eq_u32 vcc, 2, v%d" % vT0)
e("s_nop 4")
e("s_and_b32 s38, vcc_lo, 15")
e("L_go:")
e("s_mov_b64 exec, s[48:49]")
e("s_lshl_b32 s50, s%d, 19" % sT0); e("s_lshl_b32 s51, s%d, 15" % sWave); e("s_add_u32 s50, s50, s51")
e("s_lshl_b32 s52, s%d, 17" % sB); e("s_lshl_b32 s51, s%d, 10" % sP); e("s_add_u32 s52, s52, s51")
e("s_lshl_b32 s51, s%d, 8" % sWave); e("s_add_u32 s52, s52, s51")
e("v_and_b32 v%d, 31, v%d" % (vT2, vLane)); e("v_lshlrev_b32 v%d, 11, v%d" % (vT2, vT2))
e("v_lshrrev_b32 v%d, 5, v%d" % (vT3, vLane)); e("v_lshl_add_u32 v%d, v%d, 4, v%d" % (vT2, vT3, vT2))
e("s_mov_b32 s37, s%d" % sG)
e("L_quarter:")
e("s_lshl_b32 s51, s37, 13")
e("s_add_u32 s51, s51, s50")
for qt_ in range(2):
    b = 48 + qt_ * 64
    for gg in range(4):
        e("s_add_u32 s53, s51, %d" % (gg * 131072 + qt_ * 4096))
        for q in range(4):
            g.vmem("buffer_load_dwordx4 %s, v%d, s[%d:%d], s53 offen offset:%d%s" % (vr(b + gg * 16 + q * 4), vEx, sWs, sWs + 3, q * 1024, LPOL), "R%d" % qt_)
e("s_lshl_b32 s51, s37, 6")
e("s_add_u32 s51, s51, s52")
for qt_ in range(2):
    b = 48 + qt_ * 64
    g.wait_vm("R%d" % qt_)
    for i in range(16):
        e("v_add_f32 v%d, v%d, v%d" % (b + i, b + i, b + 16 + i))
    for i in range(16):
        e("v_add_f32 v%d, v%d, v%d" % (b + 32 + i, b + 32 + i, b + 48 + i))
    for i in range(16):
        e("v_add_f32 v%d, v%d, v%d" % (b + i, b + i, b + 32 + i))
    d0 = vTmp + qt_ * 8
    for k in range(8):
        e("v_cvt_pk_bf16_f32 v%d, v%d, v%d" % (d0 + k, b + 2 * k, b + 2 * k + 1))
    e("s_nop 1")
    for pair in range(2):
        d = d0 + pair * 4
        e("v_permlane32_swap_b32 v%d, v%d" % (d, d + 2))
        e("v_permlane32_swap_b32 v%d, v%d" % (d + 1, d + 3))
    e("s_add_u32 s53, s51, %d" % (qt_ * 65536))
    for pair in range(2):
        d = d0 + pair * 4
        g.vmem("buffer_store_dwordx4 %s, v%d, s[40:43], s53 offen offset:%d" % (vr(d), vT2, pair * 32), "o")
g.wait_vm_all()
e("L_next:")
e("s_cmp_eq_u32 s38, 0")
e("s_cbranch_scc1 L_fin")
e("s_ff1_i32_b32 s37, s38")
e("s_lshl_b32 s39, 1, s37")
e("s_andn2_b32 s38, s38, s39")
e("s_branch L_quarter")
e("L_fin:")
stamp()
if INSTR:
    e("s_mov_b32 s%d, 0x%x" % (sWs + 2, 0x8000000))
    e("s_lshl_b32 s%d, s2, 2" % sT0); e("s_add_u32 s%d, s%d, s%d" % (sT0, sT0, sWave)); e("s_lshl_b32 s%d, s%d, 6" % (sT0, sT0))
    e("s_add_u32 s%d, s%d, 0x4000000" % (sT0, sT0))
    e("v_mov_b32 v%d, 0" % vT1)
    for k in range(nstamp[0]):
        e("v_mov_b32 v%d, s%d" % (vT0, 70 + 2 * k))
        e("buffer_store_dword v%d, v%d, s[%d:%d], s%d offen offset:%d" % (vT0, vT1, sWs, sWs + 3, sT0, 4 * k))
        e("s_waitcnt vmcnt(0)")
e("L_end:")
e("s_endpgm")
body = g.render(sCnt)
for u in g.uses:
    body += rare_path(u)

r = []
a = r.append
a(".globl " + RN); a(".p2align 8"); a(".type %s,@function" % RN); a(RN + ":")
a("s_cmp_ge_u32 s2, 512"); a("s_cbranch_scc1 L_rend")
a("s_load_dwordx2 s[4:5], s[0:1], 80")
a("s_load_dwordx2 s[6:7], s[0:1], 96")
a("v_lshrrev_b32 v1, 6, v0"); a("v_and_b32 v2, 63, v0")
a("s_nop 0")
a("v_readfirstlane_b32 s3, v1")
a("s_lshl_b32 s16, s2, 2"); a("s_add_u32 s16, s16, s3")
a("s_lshr_b32 s17, s16, 5")
a("s_and_b32 s18, s16, 31")
a("s_lshr_b32 s19, s18, 3")
a("s_and_b32 s20, s18, 7")
a("s_lshl_b32 s21, s17, 19"); a("s_lshl_b32 s22, s19, 15"); a("s_add_u32 s21, s21, s22")
a("s_lshl_b32 s22, s20, 12"); a("s_add_u32 s21, s21, s22")
a("v_lshlrev_b32 v3, 4, v2")
a("s_waitcnt lgkmcnt(0)")
a("s_mov_b32 s8, s6"); a("s_mov_b32 s9, s7"); a("s_mov_b32 s10, 0x%x" % (64 * 4 * 131072)); a("s_mov_b32 s11, 0x20000")
a("s_mov_b32 s12, s4"); a("s_mov_b32 s13, s5"); a("s_mov_b32 s14, 0x%x" % (32 * 64 * 1024 * 2)); a("s_mov_b32 s15, 0x20000")
for gg in range(4):
    a("s_add_u32 s22, s21, %d" % (gg * 131072))
    for q in range(4):
        a("buffer_load_dwordx4 v[%d:%d], v3, s[8:11], s22 offen offset:%d" % (16 + gg * 16 + q * 4, 16 + gg * 16 + q * 4 + 3, q * 1024))
a("s_and_b32 s23, s17, 31")
a("s_lshr_b32 s24, s17, 5")
a("s_and_b32 s25, s20, 1")
a("s_lshr_b32 s26, s20, 1")
a("s_lshl_b32 s27, s23, 17")
a("s_lshl_b32 s28, s25, 16"); a("s_add_u32 s27, s27, s28")
a("s_lshl_b32 s28, s24, 10"); a("s_add_u32 s27, s27, s28")
a("s_lshl_b32 s28, s19, 8"); a("s_add_u32 s27, s27, s28")
a("s_lshl_b32 s28, s26, 6"); a("s_add_u32 s27, s27, s28")
a("v_and_b32 v4, 31, v2"); a("v_lshlrev_b32 v4, 11, v4")
a("v_lshrrev_b32 v5, 5, v2"); a("v_lshl_add_u32 v4, v5, 4, v4")
a("s_waitcnt vmcnt(8)")
for i in range(16):
    a("v_add_f32 v%d, v%d, v%d" % (16 + i, 16 + i, 32 + i))
a("s_waitcnt vmcnt(0)")
for i in range(16):
    a("v_add_f32 v%d, v%d, v%d" % (48 + i, 48 + i, 64 + i))
for i in range(16):
    a("v_add_f32 v%d, v%d, v%d" % (16 + i, 16 + i, 48 + i))
for pair in range(2):
    d = 80 + pair * 4
    s0 = 16 + pair * 8
    a("v_cvt_pk_bf16_f32 v%d, v%d, v%d" % (d, s0, s0 + 1))
    a("v_cvt_pk_bf16_f32 v%d, v%d, v%d" % (d + 1, s0 + 2, s0 + 3))
    a("v_cvt_pk_bf16_f32 v%d, v%d, v%d" % (d + 2, s0 + 4, s0 + 5))
    a("v_cvt_pk_bf16_f32 v%d, v%d, v%d" % (d + 3, s0 + 6, s0 + 7))
a("s_nop 1")
for pair in range(2):
    d = 80 + pair * 4
    a("v_permlane32_swap_b32 v%d, v%d" % (d, d + 2))
    a("v_permlane32_swap_b32 v%d, v%d" % (d + 1, d + 3))
a("s_nop 1")
for pair in range(2):
    d = 80 + pair * 4
    a("buffer_store_dwordx4 v[%d:%d], v4, s[12:15], s27 offen offset:%d" % (d, d + 3, pair * 32))
a("s_waitcnt vmcnt(0)")
a("L_rend:")
a("s_endpgm")

tail = []
t = tail.append
t('.section .rodata,"a"')
for name, nv, acc in ((KN, 512, 256),):
    t(".p2align 6"); t(".amdhsa_kernel " + name)
    t("  .amdhsa_next_free_vgpr %d" % nv); t("  .amdhsa_next_free_sgpr 102"); t("  .amdhsa_accum_offset %d" % acc)
    t("  .amdhsa_group_segment_fixed_size 0"); t("  .amdhsa_kernarg_size 104"); t("  .amdhsa_user_sgpr_count 2")
    t("  .amdhsa_user_sgpr_kernarg_segment_ptr 1"); t("  .amdhsa_system_sgpr_workgroup_id_x 1"); t(".end_amdhsa_kernel")

open(sys.argv[1], "w").write("\n".join(hdr + body + tail) + "\n")
```

```python
import sys, struct, math

KN = "concat_heads__mha_block_cached__mha_block_cached__near_ridge_kernel"
RN = "mha_reduce_kernel"

def f2u(x):
    return struct.unpack("<I", struct.pack("<f", x))[0]

class Em:
    def __init__(self):
        self.blocks = []
        self.cur = []
        self.vm = []
        self.lg = []
        self.nlabel = 0
    def e(self, s):
        self.cur.append(s)
    def vmem(self, s, tag):
        self.cur.append(s); self.vm.append(tag)
    def lds(self, s, tag="x"):
        self.cur.append(s); self.lg.append(tag)
        assert len(self.lg) <= 15, "too many lds outstanding"
    def wait_vm(self, tag):
        idxs = [i for i, t in enumerate(self.vm) if t == tag]
        if not idxs:
            return
        idx = max(idxs)
        n = len(self.vm) - 1 - idx
        assert n <= 63
        self.cur.append("s_waitcnt vmcnt(%d)" % n)
        self.vm = self.vm[idx + 1:]
    def wait_vm_all(self):
        self.cur.append("s_waitcnt vmcnt(0)"); self.vm = []
    def wait_lg(self, tag):
        idxs = [i for i, t in enumerate(self.lg) if t == tag]
        if not idxs:
            return
        idx = max(idxs)
        n = len(self.lg) - 1 - idx
        self.cur.append("s_waitcnt lgkmcnt(%d)" % n)
        self.lg = self.lg[idx + 1:]
    def wait_lg_all(self):
        self.cur.append("s_waitcnt lgkmcnt(0)"); self.lg = []
    def cut(self, kind="seq"):
        if self.cur:
            self.blocks.append((kind, self.cur))
        self.cur = []
    def render(self, cnt_sgpr):
        self.cut()
        out = []
        i = 0
        B = self.blocks
        while i < len(B):
            kind, txt = B[i]
            j = i + 1
            if kind == "iter":
                while j < len(B) and B[j][0] == "iter" and B[j][1] == txt:
                    j += 1
            n = j - i
            if n > 1:
                self.nlabel += 1
                lab = "L_loop%d" % self.nlabel
                out.append("s_mov_b32 s%d, %d" % (cnt_sgpr, n))
                out.append(".p2align 3")
                out.append(lab + ":")
                out += [t.replace("@U@", "l%d" % self.nlabel) for t in txt]
                out.append("s_sub_u32 s%d, s%d, 1" % (cnt_sgpr, cnt_sgpr))
                out.append("s_cmp_lg_u32 s%d, 0" % cnt_sgpr)
                out.append("s_cbranch_scc1 " + lab)
                self.uses.append("l%d" % self.nlabel) if any("@U@" in t for t in txt) else None
            else:
                self.nlabel += 1
                out += [t.replace("@U@", "l%d" % self.nlabel) for t in txt]
                self.uses.append("l%d" % self.nlabel) if any("@U@" in t for t in txt) else None
            i = j
        return out

sK, sV, sWq, sWo, sX, sWs = 4, 8, 12, 16, 20, 24
sWave, sB, sP, sG = 28, 29, 30, 31
sLds = 32
sKoff, sVoff = 33, 34
sWoff = 35
sXoff = 58
sT0, sT1, sT2 = 59, 60, 61
sC = 62
sCnt = 63
sTile = 64
sTileC = 65
sWoBase = 66
sTraw = 67
sOutOff = 68
vLane = 1
vKrd = 2
vTrV = 10
vTrQ = 14
vDmaK = 18
vDmaV = 22
vDmaWq = 23
vDmaWo = 24
vX = 38
vL128 = 25
vDum = 37
vEx = 26
vExR = 27
vExW = 28
vM = 29
vThr = 30
vMc0, vMc1 = 31, 32
vT0, vT1, vT2, vT3 = 33, 34, 35, 36
vL = 40
vQf = 48
vS = 112
vP = 144
vA = 160
vBf = 224
vTmp = 240
aO = 0
aQ = 128

SLOT_K, SLOT_V, SLOT_W, SLOT_E0, SLOT_E1 = 0, 8192, 16384, 24576, 32768
WAVE_LDS = 40960

SCALE = 128 ** -0.5
CLOG = SCALE * math.log2(math.e)
TLOG2 = 10.0

def vr(b, n=4): return "v[%d:%d]" % (b, b + n - 1)
def ar(b, n=16): return "a[%d:%d]" % (b, b + n - 1)

g = Em()
g.uses = []
e = g.e
import os
INSTR = int(os.environ.get("INSTR", "0"))
NOREDUCE = int(os.environ.get("NOREDUCE", "0"))
WPOL = os.environ.get("WPOL", "")
SPOL = os.environ.get("SPOL", " sc1")
LPOL = os.environ.get("LPOL", " sc1")
ROT = int(os.environ.get("ROT", "1"))
PBF = int(os.environ.get("PBF", "1"))
WARM = int(os.environ.get("WARM", "0"))
sRot = 69
sTq = 54
nstamp = [0]
def stamp():
    if not INSTR: return
    if nstamp[0] >= 16: return
    k = nstamp[0]; nstamp[0] += 1
    e("%s s[%d:%d]" % ("s_memtime" if os.environ.get("CYC") else "s_memrealtime", 70 + 2 * k, 71 + 2 * k))
    e("s_waitcnt lgkmcnt(0)")

sD0, sD1, sD2 = 55, 56, 57
def emit_groups(groups):
    for G in groups:
        emit_group(G)
def emit_group(G):
    for kind, txt, tag in G:
        if kind == "e": e(txt)
        else: g.vmem(txt, tag)

def dma_kv_g(kind, slot, tag):
    srd = sK if kind == "K" else sV
    off = sKoff if kind == "K" else sVoff
    out = []
    for i in range(8):
        G = []
        if i % 4 == 0:
            G.append(("e", "s_add_u32 m0, s%d, %d" % (sLds, slot + (i // 4) * 4096), None))
            G.append(("e", "s_add_u32 s%d, s%d, %d" % (sD0, off, (i // 4) * 4096), None))
        vo = vDmaK + (i & 3) if kind == "K" else vDmaV
        G.append(("v", "buffer_load_dwordx4 v%d, s[%d:%d], s%d offen offset:%d nt lds" % (vo, srd, srd + 3, sD0, (i & 3) * 1024), tag))
        if i == 7:
            G.append(("e", "s_add_u32 s%d, s%d, 8192" % (off, off), None))
        out.append(G)
    return out

def dma_wq_g(slot, tag):
    out = []
    for i in range(8):
        G = []
        if i == 0:
            G.append(("e", "s_add_u32 s%d, s%d, s%d" % (sD1, sTq, sRot), None))
            G.append(("e", "s_and_b32 s%d, s%d, 15" % (sD1, sD1), None))
            G.append(("e", "s_lshl_b32 s%d, s%d, 18" % (sD1, sD1), None))
            G.append(("e", "s_add_u32 s%d, s%d, s%d" % (sD1, sD1, sWoff), None))
            G.append(("e", "s_add_u32 s%d, s%d, 1" % (sTq, sTq), None))
        if i % 4 == 0:
            G.append(("e", "s_add_u32 m0, s%d, %d" % (sLds, slot + (i // 4) * 4096), None))
        G.append(("e", "s_add_u32 s%d, s%d, %d" % (sD0, sD1, i * 32768 - (i & 3) * 1024), None))
        G.append(("v", "buffer_load_dwordx4 v%d, s[%d:%d], s%d offen offset:%d%s lds" % (vDmaWq, sWq, sWq + 3, sD0, (i & 3) * 1024, WPOL), tag))
        out.append(G)
    return out

def dma_wo_g(slot, tag):
    out = []
    for i in range(8):
        G = []
        if i == 0:
            G.append(("e", "s_add_u32 s%d, s%d, s%d" % (sD2, sTile, sRot), None))
            G.append(("e", "s_and_b32 s%d, s%d, 15" % (sD2, sD2), None))
            G.append(("e", "s_lshr_b32 s%d, s%d, 2" % (sD1, sD2), None))
            G.append(("e", "s_lshl_b32 s%d, s%d, 18" % (sD1, sD1), None))
            G.append(("e", "s_and_b32 s%d, s%d, 3" % (sD2, sD2), None))
            G.append(("e", "s_lshl_b32 s%d, s%d, 15" % (sD2, sD2), None))
            G.append(("e", "s_add_u32 s%d, s%d, s%d" % (sD1, sD1, sD2), None))
            G.append(("e", "s_add_u32 s%d, s%d, s%d" % (sD1, sD1, sWoBase), None))
            G.append(("e", "s_add_u32 s%d, s%d, 1" % (sTile, sTile), None))
        if i % 4 == 0:
            G.append(("e", "s_add_u32 m0, s%d, %d" % (sLds, slot + (i // 4) * 4096), None))
        G.append(("e", "s_add_u32 s%d, s%d, %d" % (sD0, sD1, i * 4096 - (i & 3) * 1024), None))
        G.append(("v", "buffer_load_dwordx4 v%d, s[%d:%d], s%d offen offset:%d%s lds" % (vDmaWo, sWo, sWo + 3, sD0, (i & 3) * 1024, WPOL), tag))
        out.append(G)
    return out

NTOUCH = int(os.environ.get("NTOUCH", "0"))
def touch_kv():
    for i in range(NTOUCH):
        for srd, off in ((sK, sKoff), (sV, sVoff)):
            e("s_add_u32 s%d, s%d, %d" % (sD0, off, i * 8192))
            g.vmem("buffer_load_dword v%d, v%d, s[%d:%d], s%d offen nt" % (vDum, vL128, srd, srd + 3, sD0), "warm")

def dma_kv(kind, slot, tag): emit_groups(dma_kv_g(kind, slot, tag))
def dma_wq(slot, tag): emit_groups(dma_wq_g(slot, tag))
def dma_wo(slot, tag): emit_groups(dma_wo_g(slot, tag))

def pipelined(frags, depth):
    n = len(frags)
    for f in range(min(depth, n)):
        for r in frags[f][0]:
            g.lds(r, "f%d" % f)
    for f in range(n):
        g.wait_lg("f%d" % f)
        for m in frags[f][1]:
            e(m)
        if f + depth < n:
            for r in frags[f + depth][0]:
                g.lds(r, "f%d" % (f + depth))

def tr_stage(slot, pattern, acc, bfrag, first=False):
    frags = []
    base = vTrV if pattern == "V" else vTrQ
    second = 1024 if pattern == "Q" else 2048
    k = 0
    for u in range(2):
        for t in range(4):
            a = vA + (k % 16) * 4
            k += 1
            reads = ["ds_read_b64_tr_b16 v[%d:%d], v%d offset:%d" % (a, a + 1, base + t, slot + u * 4096),
                     "ds_read_b64_tr_b16 v[%d:%d], v%d offset:%d" % (a + 2, a + 3, base + t, slot + u * 4096 + second)]
            mf = []
            for qt in range(2):
                d = ar(acc + (t * 2 + qt) * 16)
                mf.append("v_mfma_f32_32x32x16_bf16 %s, %s, %s, %s" % (d, vr(a), vr(bfrag(u, qt)), "0" if (first and u == 0) else d))
            frags.append((reads, mf))
    pipelined(frags, 6)

def stream_tiles(tiles, cut_every=None):
    units = []
    k = 0
    for ti, T in enumerate(tiles):
        base = vTrV if T["pattern"] == "V" else vTrQ
        second = 1024 if T["pattern"] == "Q" else 2048
        for u in range(2):
            for t in range(4):
                a = vA + (k % 16) * 4
                k += 1
                reads = ["ds_read_b64_tr_b16 v[%d:%d], v%d offset:%d" % (a, a + 1, base + t, T["slot"] + u * 4096),
                         "ds_read_b64_tr_b16 v[%d:%d], v%d offset:%d" % (a + 2, a + 3, base + t, T["slot"] + u * 4096 + second)]
                mf = []
                for qt in range(2):
                    d = ar(T["acc"] + (t * 2 + qt) * 16)
                    mf.append("v_mfma_f32_32x32x16_bf16 %s, %s, %s, %s" % (d, vr(a), vr(T["bbuf"] + (u * 2 + qt) * 4), "0" if (T.get("first") and u == 0) else d))
                units.append(dict(reads=reads, mf=mf, tile=ti, idx=u * 4 + t))
    n = len(units)
    pend = []
    nxt = 0
    def try_issue(limit_unit):
        nonlocal nxt
        while nxt < n and nxt <= limit_unit:
            U = units[nxt]
            need = len(U["reads"]) + (4 if U["idx"] == 0 else 0)
            if len(g.lg) + need > 14:
                break
            if U["idx"] == 0:
                T = tiles[U["tile"]]
                assert not any(tag == T["vmtag"] for G in pend for (_, _, tag) in G)
                T["pre"](T["bbuf"], "u%d" % nxt)
                g.wait_vm(T["vmtag"])
            for r in U["reads"]:
                g.lds(r, "u%d" % nxt)
            nxt += 1
    LOOK = int(os.environ.get("LOOK", "6"))
    try_issue(LOOK - 1)
    for f in range(n):
        U = units[f]
        assert nxt > f
        g.wait_lg("u%d" % f)
        e(U["mf"][0])
        try_issue(f + LOOK)
        e(U["mf"][1])
        if U["idx"] == 7:
            pend += tiles[U["tile"]]["post"]()
            if INSTR == 5 and U["tile"] in (0, 1, 2, 3, 5, 7, 9, 11, 13, 15): stamp()
        if pend:
            emit_group(pend.pop(0))
        if U["idx"] == 7:
            if cut_every and (U["tile"] + 1) % cut_every == 0:
                g.cut("iter")
    emit_groups(pend)

def s_stage():
    frags = []
    for s in range(8):
        a = vA + 32 + s * 4
        reads = ["ds_read_b128 %s, v%d offset:%d" % (vr(a), vKrd + s, SLOT_K)]
        mf = []
        for qt in range(2):
            d = vr(vS + qt * 16, 16)
            mf.append("v_mfma_f32_32x32x16_bf16 %s, %s, %s, %s" % (d, vr(a), vr(vQf + (s * 2 + qt) * 4), d if s else "0"))
        frags.append((reads, mf))
    pipelined(frags, 8)

def softmax(first=False):
    e("s_nop 7"); e("s_nop 7")
    for qt, t in ((0, vT0), (1, vT1)):
        pass
    S = lambda qt, i: vS + qt * 16 + i
    e("v_max3_f32 v%d, v%d, v%d, v%d" % (vT0, S(0, 0), S(0, 1), S(0, 2)))
    e("v_max3_f32 v%d, v%d, v%d, v%d" % (vT1, S(1, 0), S(1, 1), S(1, 2)))
    for i in range(3, 15, 2):
        e("v_max3_f32 v%d, v%d, v%d, v%d" % (vT0, vT0, S(0, i), S(0, i + 1)))
        e("v_max3_f32 v%d, v%d, v%d, v%d" % (vT1, vT1, S(1, i), S(1, i + 1)))
    e("v_max_f32 v%d, v%d, v%d" % (vT0, vT0, S(0, 15)))
    e("v_max_f32 v%d, v%d, v%d" % (vT1, vT1, S(1, 15)))
    e("s_nop 1")
    e("v_permlane32_swap_b32 v%d, v%d" % (vT0, vT1))
    e("s_nop 1")
    e("v_max_f32 v%d, v%d, v%d" % (vT2, vT0, vT1))
    if first:
        e("v_mov_b32 v%d, v%d" % (vM, vT2))
        e("v_add_f32 v%d, s%d, v%d" % (vThr, sTraw, vT2))
        e("v_mul_f32 v%d, s%d, v%d" % (vMc0, sC, vT2))
        e("v_mul_f32 v%d, s%d, v%d" % (vMc1, sC, vT2))
        for i in range(8):
            e("v_mov_b32 v%d, 0" % (vL + i))
        e("v_permlane32_swap_b32 v%d, v%d" % (vMc0, vMc1))
        e("s_nop 1")
    else:
        e("v_cmp_gt_f32 vcc, v%d, v%d" % (vT2, vThr))
        e("s_nop 4")
        e("s_cbranch_vccnz L_rare_@U@")
        e("L_back_@U@:")
    for i in range(16):
        for qt in range(2):
            e("v_fma_f32 v%d, v%d, s%d, -v%d" % (S(qt, i), S(qt, i), sC, vMc0 + qt))
    for i in range(16):
        for qt in range(2):
            e("v_exp_f32 v%d, v%d" % (S(qt, i), S(qt, i)))
    e("s_nop 0")
    for i in range(16):
        for qt in range(2):
            e("v_add_f32 v%d, v%d, v%d" % (vL + qt * 4 + (i & 3), vL + qt * 4 + (i & 3), S(qt, i)))
    for qt in range(2):
        for u in range(2):
            for k in range(4):
                e("v_cvt_pk_bf16_f32 v%d, v%d, v%d" % (vP + (qt * 2 + u) * 4 + k, S(qt, 8 * u + 2 * k), S(qt, 8 * u + 2 * k + 1)))

def rare_path(u):
    o = []
    a = o.append
    a("L_rare_%s:" % u)
    a("v_max_f32 v%d, v%d, v%d" % (vT2, vT2, vM))
    a("v_sub_f32 v%d, v%d, v%d" % (vT0, vM, vT2))
    a("v_mul_f32 v%d, s%d, v%d" % (vT0, sC, vT0))
    a("v_exp_f32 v%d, v%d" % (vT0, vT0))
    a("v_mov_b32 v%d, v%d" % (vM, vT2))
    a("v_add_f32 v%d, s%d, v%d" % (vThr, sTraw, vT2))
    a("v_mul_f32 v%d, s%d, v%d" % (vMc0, sC, vT2))
    a("v_mov_b32 v%d, v%d" % (vT1, vT0))
    a("v_mov_b32 v%d, v%d" % (vMc1, vMc0))
    a("s_nop 1")
    a("v_permlane32_swap_b32 v%d, v%d" % (vT0, vT1))
    a("v_permlane32_swap_b32 v%d, v%d" % (vMc0, vMc1))
    a("s_nop 1")
    for qt in range(2):
        for k in range(4):
            a("v_mul_f32 v%d, v%d, v%d" % (vL + qt * 4 + k, vL + qt * 4 + k, vT0 + qt))
    for t in range(4):
        for qt in range(2):
            b = aO + (t * 2 + qt) * 16
            for i in range(16):
                a("v_accvgpr_read_b32 v%d, a%d" % (vTmp + i, b + i))
            for i in range(16):
                a("v_mul_f32 v%d, v%d, v%d" % (vTmp + i, vTmp + i, vT0 + qt))
            for i in range(16):
                a("v_accvgpr_write_b32 a%d, v%d" % (b + i, vTmp + i))
    a("s_nop 1")
    a("s_branch L_back_%s" % u)
    return o

def init_head():
    for i in range(128):
        e("v_accvgpr_write_b32 a%d, 0" % (aO + i))
    for i in range(8):
        e("v_mov_b32 v%d, 0" % (vL + i))
    e("v_mov_b32 v%d, 0x%08x" % (vM, f2u(-1e30)))
    e("v_mov_b32 v%d, 0x%08x" % (vThr, f2u(-1e30)))
    e("v_mov_b32 v%d, 0" % vMc0)
    e("v_mov_b32 v%d, 0" % vMc1)

def zero_q():
    for i in range(128):
        e("v_accvgpr_write_b32 a%d, 0" % (aQ + i))

def q_convert():
    e("s_nop 7"); e("s_nop 7")
    for t in range(4):
        for qt in range(2):
            b = aQ + (t * 2 + qt) * 16
            for i in range(16):
                e("v_accvgpr_read_b32 v%d, a%d" % (vTmp + i, b + i))
            for u in range(2):
                for k in range(4):
                    e("v_cvt_pk_bf16_f32 v%d, v%d, v%d" % (vQf + ((2 * t + u) * 2 + qt) * 4 + k, vTmp + 8 * u + 2 * k, vTmp + 8 * u + 2 * k + 1))

def finalize_head():
    e("s_nop 7"); e("s_nop 7")
    for qt in range(2):
        e("v_add_f32 v%d, v%d, v%d" % (vL + qt * 4, vL + qt * 4, vL + qt * 4 + 1))
        e("v_add_f32 v%d, v%d, v%d" % (vL + qt * 4 + 2, vL + qt * 4 + 2, vL + qt * 4 + 3))
    for qt in range(2):
        e("v_add_f32 v%d, v%d, v%d" % (vT0 + qt, vL + qt * 4, vL + qt * 4 + 2))
    e("s_nop 1")
    e("v_permlane32_swap_b32 v%d, v%d" % (vT0, vT1))
    e("s_nop 1")
    e("v_add_f32 v%d, v%d, v%d" % (vT0, vT0, vT1))
    e("v_rcp_f32 v%d, v%d" % (vT0, vT0))
    e("s_nop 1")
    e("v_mov_b32 v%d, v%d" % (vT1, vT0))
    e("s_nop 1")
    e("v_permlane32_swap_b32 v%d, v%d" % (vT0, vT1))
    e("s_nop 1")
    for t in range(4):
        for qt in range(2):
            b = aO + (t * 2 + qt) * 16
            for i in range(16):
                e("v_accvgpr_read_b32 v%d, a%d" % (vTmp + i, b + i))
            for i in range(16):
                e("v_mul_f32 v%d, v%d, v%d" % (vTmp + i, vTmp + i, vT0 + qt))
            pk = vA + ((t * 2 + qt) % 4) * 8
            for k in range(8):
                e("v_cvt_pk_bf16_f32 v%d, v%d, v%d" % (pk + k, vTmp + 2 * k, vTmp + 2 * k + 1))
            for u in range(2):
                g.lds("ds_write_b128 v%d, %s offset:%d" % (vExW, vr(pk + 4 * u), ((2 * t + u) * 2 + qt) * 1024), "w")
            if (t * 2 + qt) % 4 == 3:
                g.wait_lg_all()

def ex_read(bb=None, tag='b'):
    bb = vBf if bb is None else bb
    e("s_add_u32 s%d, s%d, s%d" % (sT2, sTileC, sRot))
    e("s_and_b32 s%d, s%d, 15" % (sT2, sT2))
    e("s_lshr_b32 s%d, s%d, 2" % (sT1, sT2))
    e("s_mul_i32 s%d, s%d, %d" % (sT1, sT1, WAVE_LDS))
    e("s_and_b32 s%d, s%d, 3" % (sT2, sT2))
    e("s_lshl_b32 s%d, s%d, 12" % (sT2, sT2))
    e("s_add_u32 s%d, s%d, s%d" % (sT1, sT1, sT2))
    e("v_add_u32 v%d, s%d, v%d" % (vExR, sT1, vEx))
    e("s_add_u32 s%d, s%d, 1" % (sTileC, sTileC))
    for k in range(4):
        g.lds("ds_read_b128 %s, v%d offset:%d" % (vr(bb + 4 * k), vExR, SLOT_E0 + k * 1024), tag)

def x_read(bb=None, tag='b'):
    bb = vBf if bb is None else bb
    e("s_add_u32 s%d, s%d, s%d" % (sT2, sXoff, sRot))
    e("s_and_b32 s%d, s%d, 15" % (sT2, sT2))
    e("s_lshl_b32 s%d, s%d, 6" % (sT2, sT2))
    e("s_xor_b32 s%d, s%d, 32" % (sT1, sT2))
    for u in range(2):
        for qt in range(2):
            e("v_xor_b32 v%d, s%d, v%d" % (vT0 + u * 2 + qt, sT2 if u == 0 else sT1, vX + qt))
    for u in range(2):
        for qt in range(2):
            g.lds("ds_read_b128 %s, v%d" % (vr(bb + 4 * (u * 2 + qt)), vT0 + u * 2 + qt), tag)
    e("s_add_u32 s%d, s%d, 1" % (sXoff, sXoff))

hdr = []
h = hdr.append
h("; @launch grid=(256,1,1) block=(256,1,1) lds=163840")
h("; K/V/Wq/Wo tiles stream HBM/L2 -> LDS by LDS-DMA into wave-private slots (xor-swizzled on the source side).")
h('.amdgcn_target "amdgcn-amd-amdhsa--gfx950"')
h(".text"); h(".globl " + KN); h(".p2align 8"); h(".type %s,@function" % KN); h(KN + ":")

e("s_cmp_ge_u32 s2, 256"); e("s_cbranch_scc1 L_end")
e("s_load_dwordx16 s[36:51], s[0:1], 0")
e("s_load_dwordx4 s[52:55], s[0:1], 64")
e("s_load_dwordx2 s[56:57], s[0:1], 96")
stamp()
L = vLane
tA, tB, tC = vTmp, vTmp + 1, vTmp + 2
e("v_lshrrev_b32 v%d, 6, v0" % vT0)
e("v_and_b32 v%d, 63, v0" % vLane)
e("v_lshlrev_b32 v%d, 7, v%d" % (vL128, vLane))
e("v_readfirstlane_b32 s%d, v%d" % (sWave, vT0))
e("v_lshlrev_b32 v%d, 4, v%d" % (vEx, L))
e("s_lshr_b32 s%d, s2, 3" % sB)
e("s_lshr_b32 s%d, s2, 2" % sP); e("s_and_b32 s%d, s%d, 1" % (sP, sP))
e("s_and_b32 s%d, s2, 3" % sG)
e("s_mul_i32 s%d, s%d, %d" % (sLds, sWave, WAVE_LDS))
e("s_mov_b32 s%d, 0x%08x" % (sC, f2u(CLOG)))
e("s_mov_b32 s%d, 0x%08x" % (sTraw, f2u(TLOG2 / CLOG)))
e("s_lshl_b32 s%d, s%d, 3" % (sT0, sG)); e("s_lshl_b32 s%d, s%d, 1" % (sT1, sWave)); e("s_add_u32 s%d, s%d, s%d" % (sT0, sT0, sT1))
e("s_lshl_b32 s%d, s%d, 8" % (sWoff, sT0))
e("s_lshl_b32 s%d, s%d, 5" % (sT1, sB)); e("s_add_u32 s%d, s%d, s%d" % (sT1, sT1, sT0))
e("s_lshl_b32 s%d, s%d, 17" % (sKoff, sT1)); e("s_mov_b32 s%d, s%d" % (sVoff, sKoff))
e("s_lshl_b32 s%d, s%d, 20" % (sWoBase, sG)); e("s_lshl_b32 s%d, s%d, 8" % (sT1, sWave)); e("s_add_u32 s%d, s%d, s%d" % (sWoBase, sWoBase, sT1))
e("s_mov_b32 s%d, 0" % sTile); e("s_mov_b32 s%d, 0" % sTileC)
e("s_lshl_b32 s%d, s%d, 5" % (sT0, sP)); e("s_add_u32 s%d, s%d, s%d" % (sT0, sT0, sB))
e("s_lshl_b32 s%d, s%d, 2" % (sT0, sT0)); e("s_add_u32 s%d, s%d, s%d" % (sT0, sT0, sG))
e("s_lshl_b32 s%d, s%d, 2" % (sT0, sT0)); e("s_add_u32 s%d, s%d, s%d" % (sT0, sT0, sWave))
e("s_lshl_b32 s%d, s%d, 15" % (sOutOff, sT0))
e("s_lshl_b32 s%d, s%d, 16" % (sXoff, sB)); e("s_lshl_b32 s%d, s%d, 14" % (sT0, sWave)); e("s_add_u32 s%d, s%d, s%d" % (sXoff, sXoff, sT0))
e("v_lshrrev_b32 v%d, 4, v%d" % (vT0, L))
e("v_and_b32 v%d, 15, v%d" % (vT2, L))
e("v_lshlrev_b32 v%d, 2, v%d" % (tA, vT0))
e("v_xor_b32 v%d, v%d, v%d" % (tA, tA, vT2))
e("v_lshlrev_b32 v%d, 4, v%d" % (tA, tA))
e("v_lshl_add_u32 v%d, v%d, 8, v%d" % (vDmaV, vT0, tA))
e("v_lshl_add_u32 v%d, v%d, 13, v%d" % (vDmaWq, vT0, tA))
e("v_lshl_add_u32 v%d, v%d, 10, v%d" % (vDmaWo, vT0, tA))
e("v_lshlrev_b32 v%d, 7, v%d" % (tB, vT2)); e("v_lshl_add_u32 v%d, v%d, 13, v%d" % (tB, vT0, tB))
e("s_lshl_b32 s%d, s%d, 4" % (sT2, sB)); e("s_lshl_b32 s%d, s%d, 2" % (sT1, sWave)); e("s_add_u32 s%d, s%d, s%d" % (sT2, sT2, sT1))
e("s_lshl_b32 s%d, s%d, 13" % (sT2, sT2)); e("s_lshl_b32 s%d, s%d, 11" % (sT1, sG)); e("s_add_u32 s%d, s%d, s%d" % (sT2, sT2, sT1))
e("s_waitcnt lgkmcnt(0)")
e("s_cmp_eq_u32 s%d, 0" % sP)
for srd, a, b, size in ((sX, 36, 46, 32 * 64 * 512 * 2), (sK, 38, 48, 1 << 27), (sV, 40, 50, 1 << 27),
                        (sWq, 42, 52, 512 * 4096 * 2), (sWo, 44, 54, 4096 * 512 * 2)):
    e("s_cselect_b32 s%d, s%d, s%d" % (srd, a, b))
    e("s_cselect_b32 s%d, s%d, s%d" % (srd + 1, a + 1, b + 1))
    e("s_mov_b32 s%d, 0x%x" % (srd + 2, size))
    e("s_mov_b32 s%d, 0x20000" % (srd + 3))
e("s_mov_b32 s%d, s56" % sWs); e("s_mov_b32 s%d, s57" % (sWs + 1))
e("s_mov_b32 s%d, 0x%x" % (sWs + 2, 0x4000000)); e("s_mov_b32 s%d, 0x20000" % (sWs + 3))
e("s_mov_b32 s%d, 0" % sTq)
e("s_and_b32 s%d, s%d, %d" % (sRot, sB, 15 if ROT else 0))
e("v_mov_b32 v%d, 0" % vThr)
if INSTR == 3: stamp()
if WARM: g.vmem("buffer_load_dword v%d, v%d, s[%d:%d], s%d offen%s" % (vDum, tB, sWq, sWq + 3, sT2, WPOL), "warm")
if INSTR == 3: stamp()
g.vmem("buffer_load_dword v%d, v%d, s[%d:%d], s%d offen nt" % (vDum, vThr, sK, sK + 3, sKoff), "warm")
if INSTR == 3: stamp()
g.vmem("buffer_load_dword v%d, v%d, s[%d:%d], s%d offen nt" % (vDum, vThr, sV, sV + 3, sVoff), "warm")
if INSTR == 3: stamp()
for i in range(16):
    if i % 4 == 0:
        e("s_add_u32 m0, s%d, %d" % (sLds, SLOT_E0 + i * 1024))
        e("s_add_u32 s%d, s%d, %d" % (sT0, sXoff, i * 1024))
    e("v_xor_b32 v%d, %d, v%d" % (tC, i * 16, vEx))
    g.vmem("buffer_load_dwordx4 v%d, s[%d:%d], s%d offen offset:%d%s lds" % (tC, sX, sX + 3, sT0, (i & 3) * 1024, os.environ.get("XPOL", " nt")), "X")
    if INSTR == 3 and i in (0, 1, 3, 7, 15): stamp()
ring0 = [SLOT_W, SLOT_K, SLOT_V]
for t in range(3):
    dma_wq(ring0[t], "W%d" % t)
    if INSTR == 3: stamp()
g.vmem("buffer_load_dword v%d, v%d, s[%d:%d], s%d offen nt" % (vDum, vThr, sWo, sWo + 3, sWoBase), "warm")
g.vmem("buffer_load_dword v%d, v%d, s[%d:%d], s%d offen nt" % (vDum, vThr, sWs, sWs + 3, sOutOff), "warm")
stamp()
e("s_mov_b32 s%d, 0" % sXoff)
for i in range(4):
    e("v_add_u32 v%d, %d, v%d" % (tA, 4 * i, vT0))
    e("v_xor_b32 v%d, v%d, v%d" % (tA, tA, vT2))
    e("v_lshlrev_b32 v%d, 4, v%d" % (tA, tA))
    e("v_lshl_add_u32 v%d, v%d, 8, v%d" % (vDmaK + i, vT0, tA))
e("v_and_b32 v%d, 31, v%d" % (vT0, L))
e("v_lshrrev_b32 v%d, 5, v%d" % (vT1, L))
e("v_and_b32 v%d, 15, v%d" % (vT2, L))
e("v_xor_b32 v%d, v%d, v%d" % (vT3, vT2, vT1))
e("v_lshlrev_b32 v%d, 4, v%d" % (vT3, vT3))
e("v_lshrrev_b32 v%d, 4, v%d" % (tA, vT0))
e("v_mul_u32_u24 v%d, %d, v%d" % (tA, WAVE_LDS, tA))
e("v_lshl_add_u32 v%d, v%d, 10, v%d" % (tA, vT2, tA))
e("v_add_u32 v%d, v%d, v%d" % (tA, tA, vT3))
e("v_add_u32 v%d, %d, v%d" % (vX, SLOT_E0, tA))
e("v_add_u32 v%d, %d, v%d" % (vX + 1, SLOT_E0 + 2 * WAVE_LDS, tA))
e("v_lshl_add_u32 v%d, v%d, 8, v%d" % (vT2, vT0, vT3))
for s in range(8):
    e("v_xor_b32 v%d, %d, v%d" % (vKrd + s, s * 32, vT2))
    e("v_add_u32 v%d, s%d, v%d" % (vKrd + s, sLds, vKrd + s))
e("v_lshrrev_b32 v%d, 2, v%d" % (vT0, L)); e("v_and_b32 v%d, 3, v%d" % (vT0, vT0))
e("v_and_b32 v%d, 3, v%d" % (vT2, L))
e("v_lshrrev_b32 v%d, 4, v%d" % (vT3, L)); e("v_and_b32 v%d, 1, v%d" % (vT3, vT3))
e("v_lshl_add_u32 v%d, v%d, 2, v%d" % (tA, vT1, vT0))
e("v_lshlrev_b32 v%d, 8, v%d" % (tA, tA))
e("v_lshl_add_u32 v%d, v%d, 5, v%d" % (tA, vT3, tA))
e("v_lshl_add_u32 v%d, v%d, 3, v%d" % (tA, vT2, tA))
e("v_add_u32 v%d, s%d, v%d" % (tA, sLds, tA))
for t in range(4):
    e("v_xor_b32 v%d, %d, v%d" % (tB, t, vT0))
    e("v_lshl_add_u32 v%d, v%d, 6, v%d" % (vTrV + t, tB, tA))
e("v_lshl_add_u32 v%d, v%d, 3, v%d" % (tA, vT1, vT0))
e("v_lshlrev_b32 v%d, 8, v%d" % (tA, tA))
e("v_lshl_add_u32 v%d, v%d, 5, v%d" % (tA, vT3, tA))
e("v_lshrrev_b32 v%d, 1, v%d" % (tB, vT2))
e("v_and_b32 v%d, 1, v%d" % (tC, vT2))
e("v_lshl_add_u32 v%d, v%d, 1, v%d" % (tB, tC, tB))
e("v_lshl_add_u32 v%d, v%d, 3, v%d" % (tA, tB, tA))
e("v_add_u32 v%d, s%d, v%d" % (tA, sLds, tA))
for t in range(4):
    e("v_xor_b32 v%d, %d, v%d" % (tB, t, vT0))
    e("v_lshl_add_u32 v%d, v%d, 6, v%d" % (vTrQ + t, tB, tA))
e("v_add_u32 v%d, s%d, v%d" % (vExW, sLds, vEx))
e("v_add_u32 v%d, %d, v%d" % (vExW, SLOT_E0, vExW))
g.wait_vm("X")
e("s_barrier")
stamp()
g.cut()

bf = lambda u, qt: vBf + (u * 2 + qt) * 4
pf = lambda u, qt: vP + (qt * 2 + u) * 4
def post0(t):
    def f():
        if t + 3 < 16:
            return dma_wq_g(ring0[t % 3], "W%d" % (t % 3))
        elif t == 13:
            return dma_kv_g("K", SLOT_K, "K")
        elif t == 14:
            return dma_kv_g("V", SLOT_V, "V")
        else:
            G = dma_wq_g(SLOT_W, "W")
            G[0].insert(0, ("e", "s_add_u32 s%d, s%d, 256" % (sWoff, sWoff), None))
            return G
    return f
stream_tiles([dict(slot=ring0[t % 3], pattern="Q", acc=aQ, bbuf=(vBf, vP)[t % 2], pre=x_read, vmtag="W%d" % (t % 3),
                   post=post0(t), first=(t == 0)) for t in range(16)], cut_every=6)
g.cut()
touch_kv()
q_convert()
stamp()
g.cut()

for c in range(16):
    g.wait_vm("K")
    s_stage()
    dma_kv("K", SLOT_K, "K")
    softmax(first=(c == 0))
    g.wait_vm("V")
    tr_stage(SLOT_V, "V", aO, pf, first=(c == 0))
    dma_kv("V", SLOT_V, "V")
    x_read()
    g.wait_vm("W")
    g.wait_lg("b")
    tr_stage(SLOT_W, "Q", aQ, bf, first=(c == 0))
    if c < 15:
        dma_wq(SLOT_W, "W")
    else:
        dma_wo(SLOT_W, "W")
    g.cut("iter")
stamp()
touch_kv()
e("s_lshl_b32 s%d, s%d, 5" % (sT0, sB)); e("s_lshl_b32 s%d, s%d, 3" % (sT1, sWave)); e("s_add_u32 s%d, s%d, s%d" % (sT0, sT0, sT1))
e("s_lshl_b32 s%d, s%d, 10" % (sT0, sT0)); e("s_lshl_b32 s%d, s%d, 20" % (sT1, sG)); e("s_add_u32 s%d, s%d, s%d" % (sT0, sT0, sT1))
if WARM: g.vmem("buffer_load_dword v%d, v%d, s[%d:%d], s%d offen%s" % (vDum, vL128, sWo, sWo + 3, sT0, WPOL), "warm")
q_convert()
for tp in range(4):
    e("s_add_u32 s%d, s%d, %d" % (sT0, sG, tp)); e("s_and_b32 s%d, s%d, 3" % (sT0, sT0)); e("s_lshl_b32 s%d, s%d, 6" % (sT0, sT0))
    e("v_xor_b32 v%d, s%d, v%d" % (vTrQ + tp, sT0, vTrV))
e("s_barrier")
finalize_head()
e("s_barrier")
stamp()
g.cut()
for c in range(16):
    g.wait_vm("K")
    s_stage()
    if c < 15:
        dma_kv("K", SLOT_K, "K")
    else:
        e("s_add_u32 s%d, s%d, 131072" % (sWoBase, sWoBase))
        e("s_mov_b32 s%d, 0" % sTile)
        dma_wo(SLOT_K, "T0")
    softmax(first=(c == 0))
    g.wait_vm("V")
    tr_stage(SLOT_V, "V", aO, pf, first=(c == 0))
    if c < 15:
        dma_kv("V", SLOT_V, "V")
    else:
        dma_wo(SLOT_V, "T1")
    ex_read()
    g.wait_vm("W")
    g.wait_lg("b")
    tr_stage(SLOT_W, "O", aQ, bf, first=(c == 0))
    if c < 15:
        dma_wo(SLOT_W, "W")
    else:
        dma_wo(SLOT_W, "T2")
    g.cut("iter")
stamp()
e("s_barrier")
finalize_head()
e("s_barrier")
e("s_mov_b32 s%d, 0" % sTileC)
stamp()
g.cut()
ring3 = [SLOT_K, SLOT_V, SLOT_W]
def post3(t):
    def f():
        if t + 3 < 16:
            return dma_wo_g(ring3[t % 3], "T%d" % (t % 3))
        return []
    return f
stream_tiles([dict(slot=ring3[t % 3], pattern="O", acc=aQ, bbuf=(vBf, vP)[t % 2], pre=ex_read, vmtag="T%d" % (t % 3),
                   post=post3(t)) for t in range(16)], cut_every=6)
g.cut()
stamp()
e("s_nop 7"); e("s_nop 7")
vOwn = 112
def store_pos(tp):
    e("s_add_u32 s%d, s%d, %d" % (sT0, sG, tp)); e("s_and_b32 s%d, s%d, 3" % (sT0, sT0)); e("s_lshl_b32 s%d, s%d, 12" % (sT0, sT0))
    e("s_add_u32 s%d, s%d, s%d" % (sT0, sT0, sOutOff))
    for k in range(4):
        g.vmem("buffer_store_dwordx4 %s, v%d, s[%d:%d], s%d offen offset:%d%s" % (vr(vOwn + tp * 16 + 4 * k), vEx, sWs, sWs + 3, sT0, k * 1024, SPOL), "st")
for tp in (1, 2, 3, 0):
    for qt_ in range(2):
        j = tp * 2 + qt_
        tb = 48 + qt_ * 16
        pk = vOwn + j * 8
        for i in range(16):
            e("v_accvgpr_read_b32 v%d, a%d" % (tb + i, aQ + j * 16 + i))
        for k in range(8):
            e("v_cvt_pk_bf16_f32 v%d, v%d, v%d" % (pk + k, tb + 2 * k, tb + 2 * k + 1))
    if tp:
        store_pos(tp)
e("s_lshl_b32 s%d, s%d, 5" % (sT0, sP)); e("s_add_u32 s%d, s%d, s%d" % (sT0, sT0, sB))
e("s_lshl_b32 s54, s%d, 2" % sT0); e("s_add_u32 s54, s54, s%d" % sWave); e("s_lshl_b32 s54, s54, 9")
e("s_add_u32 s54, s54, 0x3000000")
e("s_lshl_b32 s55, s%d, 7" % sG); e("s_add_u32 s55, s55, s54")
e("v_mov_b32 v%d, 0" % vM)
e("s_mov_b64 s[48:49], exec")
e("s_mov_b64 exec, 1")
g.vmem("buffer_store_dword v%d, v%d, s[%d:%d], s55 offen sc1" % (vM, vM, sWs, sWs + 3), "st")
e("s_mov_b64 exec, s[48:49]")
e("s_load_dwordx4 s[40:43], s[0:1], 80")
e("s_lshl_b32 s%d, s%d, 3" % (sT1, sWave))
e("s_lshl_b32 s%d, 1, s%d" % (sT2, sT1))
e("v_mov_b32 v%d, s%d" % (vT0, sT2))
e("s_lshl_b32 s%d, s%d, 5" % (sT0, sP)); e("s_add_u32 s%d, s%d, s%d" % (sT0, sT0, sB))
e("s_lshl_b32 s%d, s%d, 2" % (sT2, sT0))
e("v_mov_b32 v%d, s%d" % (vT1, sT2))
e("s_waitcnt lgkmcnt(0)")
e("s_mov_b32 s44, s42"); e("s_mov_b32 s45, s43"); e("s_mov_b32 s46, 256"); e("s_mov_b32 s47, 0x20000")
e("s_mov_b32 s42, 0x%x" % (32 * 64 * 1024 * 2)); e("s_mov_b32 s43, 0x20000")
g.wait_vm_all()
stamp()
e("s_mov_b64 exec, 1")
e("buffer_atomic_add v%d, v%d, s[44:47], 0 offen sc0 sc1" % (vT0, vT1))
e("s_waitcnt vmcnt(0)")
e("v_readfirstlane_b32 s%d, v%d" % (sT2, vT0))
e("s_lshr_b32 s%d, s%d, s%d" % (sT2, sT2, sT1))
e("s_and_b32 s%d, s%d, 7" % (sT2, sT2))
e("s_mov_b32 s38, 0")
e("s_cmp_eq_u32 s%d, 3" % sT2)
e("s_cbranch_scc1 L_last")
e("s_memrealtime s[36:37]")
e("s_waitcnt lgkmcnt(0)")
e("s_add_u32 s39, s36, %d" % int(os.environ.get("TMO", "6000")))
e("L_spin:")
e("s_sleep 8")
e("buffer_load_dword v%d, v%d, s[%d:%d], s55 offen sc1" % (vT0, vM, sWs, sWs + 3))
e("s_memrealtime s[36:37]")
e("s_waitcnt vmcnt(0) lgkmcnt(0)")
e("v_readfirstlane_b32 s%d, v%d" % (sT2, vT0))
e("s_cmp_eq_u32 s%d, 1" % sT2)
e("s_cbranch_scc1 L_go")
e("s_sub_u32 s37, s39, s36")
e("s_cmp_lt_i32 s37, 0")
e("s_cbranch_scc0 L_spin")
e("s_mov_b64 exec, s[48:49]")
e("s_mov_b32 s36, s%d" % sT0)
store_pos(0)
g.wait_vm_all()
e("s_mov_b32 s%d, s36" % sT0)
e("s_mov_b64 exec, 1")
e("v_mov_b32 v%d, 2" % vT0)
e("buffer_atomic_swap v%d, v%d, s[%d:%d], s55 offen sc0 sc1" % (vT0, vM, sWs, sWs + 3))
e("s_waitcnt vmcnt(0)")
e("v_readfirstlane_b32 s%d, v%d" % (sT2, vT0))
e("s_cmp_eq_u32 s%d, 1" % sT2)
e("s_cbranch_scc1 L_go")
e("s_mov_b64 exec, s[48:49]")
e("s_branch L_fin")
e("L_last:")
e("s_mov_b64 exec, 15")
e("v_mov_b32 v%d, 1" % vT0)
e("buffer_atomic_swap v%d, v%d, s[%d:%d], s54 offen sc0 sc1" % (vT0, vL128, sWs, sWs + 3))
e("s_waitcnt vmcnt(0)")
e("v_cmp_eq_u32 vcc, 2, v%d" % vT0)
e("s_nop 4")
e("s_and_b32 s38, vcc_lo, 15")
e("L_go:")
e("s_mov_b64 exec, s[48:49]")
e("s_lshl_b32 s50, s%d, 19" % sT0); e("s_lshl_b32 s51, s%d, 15" % sWave); e("s_add_u32 s50, s50, s51")
e("s_lshl_b32 s52, s%d, 17" % sB); e("s_lshl_b32 s51, s%d, 10" % sP); e("s_add_u32 s52, s52, s51")
e("s_lshl_b32 s51, s%d, 8" % sWave); e("s_add_u32 s52, s52, s51")
e("v_and_b32 v%d, 31, v%d" % (vT2, vLane)); e("v_lshlrev_b32 v%d, 11, v%d" % (vT2, vT2))
e("v_lshrrev_b32 v%d, 5, v%d" % (vT3, vLane)); e("v_lshl_add_u32 v%d, v%d, 4, v%d" % (vT2, vT3, vT2))
e("s_mov_b32 s37, s%d" % sG)
e("L_quarter:")
e("s_lshl_b32 s51, s37, 12")
e("s_add_u32 s51, s51, s50")
e("s_cmp_lg_u32 s37, s%d" % sG)
e("s_cbranch_scc1 L_r0mem")
for qt_ in range(2):
    for k in range(8):
        e("v_mov_b32 v%d, v%d" % (176 + qt_ * 32 + k, vOwn + qt_ * 8 + k))
e("s_branch L_r0done")
e("L_r0mem:")
e("s_lshl_b32 s53, s37, 17")
e("s_add_u32 s53, s53, s51")
for qt_ in range(2):
    for q in range(2):
        e("buffer_load_dwordx4 %s, v%d, s[%d:%d], s53 offen offset:%d%s" % (vr(176 + qt_ * 32 + q * 4), vEx, sWs, sWs + 3, qt_ * 2048 + q * 1024, LPOL))
e("L_r0done:")
for qt_ in range(2):
    for rr in range(1, 4):
        e("s_add_u32 s53, s37, %d" % rr); e("s_and_b32 s53, s53, 3"); e("s_lshl_b32 s53, s53, 17")
        e("s_add_u32 s53, s53, s51")
        for q in range(2):
            g.vmem("buffer_load_dwordx4 %s, v%d, s[%d:%d], s53 offen offset:%d%s" % (vr(176 + qt_ * 32 + rr * 8 + q * 4), vEx, sWs, sWs + 3, qt_ * 2048 + q * 1024, LPOL), "R%d" % qt_)
e("s_lshl_b32 s51, s37, 6")
e("s_add_u32 s51, s51, s52")
for qt_ in range(2):
    b = 48 + qt_ * 32 if False else (48 if qt_ == 0 else 128)
    g.wait_vm("R%d" % qt_)
    for gg in range(4):
        for k in range(8):
            src = 176 + qt_ * 32 + gg * 8 + k
            if gg < 3 or True:
                pass
    for gg in range(4):
        dst = b if gg == 0 else b + 16
        for k in range(8):
            src = 176 + qt_ * 32 + gg * 8 + k
            e("v_lshlrev_b32 v%d, 16, v%d" % (dst + 2 * k, src))
            e("v_and_b32 v%d, 0xffff0000, v%d" % (dst + 2 * k + 1, src))
        if gg:
            for i in range(16):
                e("v_add_f32 v%d, v%d, v%d" % (b + i, b + i, b + 16 + i))
    d0 = vTmp + qt_ * 8
    for k in range(8):
        e("v_cvt_pk_bf16_f32 v%d, v%d, v%d" % (d0 + k, b + 2 * k, b + 2 * k + 1))
    e("s_nop 1")
    for pair in range(2):
        d = d0 + pair * 4
        e("v_permlane32_swap_b32 v%d, v%d" % (d, d + 2))
        e("v_permlane32_swap_b32 v%d, v%d" % (d + 1, d + 3))
    e("s_add_u32 s53, s51, %d" % (qt_ * 65536))
    for pair in range(2):
        d = d0 + pair * 4
        g.vmem("buffer_store_dwordx4 %s, v%d, s[40:43], s53 offen offset:%d%s" % (vr(d), vT2, pair * 32, os.environ.get("OPOL", "")), "o")
g.wait_vm_all()
e("L_next:")
e("s_cmp_eq_u32 s38, 0")
e("s_cbranch_scc1 L_fin")
e("s_ff1_i32_b32 s37, s38")
e("s_lshl_b32 s39, 1, s37")
e("s_andn2_b32 s38, s38, s39")
e("s_branch L_quarter")
e("L_fin:")
stamp()
if INSTR:
    e("s_mov_b32 s%d, 0x%x" % (sWs + 2, 0x8000000))
    e("s_lshl_b32 s%d, s2, 2" % sT0); e("s_add_u32 s%d, s%d, s%d" % (sT0, sT0, sWave)); e("s_lshl_b32 s%d, s%d, 6" % (sT0, sT0))
    e("s_add_u32 s%d, s%d, 0x4000000" % (sT0, sT0))
    e("v_mov_b32 v%d, 0" % vT1)
    for k in range(nstamp[0]):
        e("v_mov_b32 v%d, s%d" % (vT0, 70 + 2 * k))
        e("buffer_store_dword v%d, v%d, s[%d:%d], s%d offen offset:%d" % (vT0, vT1, sWs, sWs + 3, sT0, 4 * k))
        e("s_waitcnt vmcnt(0)")
e("L_end:")
e("s_endpgm")
body = g.render(sCnt)
for u in g.uses:
    body += rare_path(u)

r = []
a = r.append
a(".globl " + RN); a(".p2align 8"); a(".type %s,@function" % RN); a(RN + ":")
a("s_cmp_ge_u32 s2, 512"); a("s_cbranch_scc1 L_rend")
a("s_load_dwordx2 s[4:5], s[0:1], 80")
a("s_load_dwordx2 s[6:7], s[0:1], 96")
a("v_lshrrev_b32 v1, 6, v0"); a("v_and_b32 v2, 63, v0")
a("s_nop 0")
a("v_readfirstlane_b32 s3, v1")
a("s_lshl_b32 s16, s2, 2"); a("s_add_u32 s16, s16, s3")
a("s_lshr_b32 s17, s16, 5")
a("s_and_b32 s18, s16, 31")
a("s_lshr_b32 s19, s18, 3")
a("s_and_b32 s20, s18, 7")
a("s_lshl_b32 s21, s17, 19"); a("s_lshl_b32 s22, s19, 15"); a("s_add_u32 s21, s21, s22")
a("s_lshl_b32 s22, s20, 12"); a("s_add_u32 s21, s21, s22")
a("v_lshlrev_b32 v3, 4, v2")
a("s_waitcnt lgkmcnt(0)")
a("s_mov_b32 s8, s6"); a("s_mov_b32 s9, s7"); a("s_mov_b32 s10, 0x%x" % (64 * 4 * 131072)); a("s_mov_b32 s11, 0x20000")
a("s_mov_b32 s12, s4"); a("s_mov_b32 s13, s5"); a("s_mov_b32 s14, 0x%x" % (32 * 64 * 1024 * 2)); a("s_mov_b32 s15, 0x20000")
for gg in range(4):
    a("s_add_u32 s22, s21, %d" % (gg * 131072))
    for q in range(4):
        a("buffer_load_dwordx4 v[%d:%d], v3, s[8:11], s22 offen offset:%d" % (16 + gg * 16 + q * 4, 16 + gg * 16 + q * 4 + 3, q * 1024))
a("s_and_b32 s23, s17, 31")
a("s_lshr_b32 s24, s17, 5")
a("s_and_b32 s25, s20, 1")
a("s_lshr_b32 s26, s20, 1")
a("s_lshl_b32 s27, s23, 17")
a("s_lshl_b32 s28, s25, 16"); a("s_add_u32 s27, s27, s28")
a("s_lshl_b32 s28, s24, 10"); a("s_add_u32 s27, s27, s28")
a("s_lshl_b32 s28, s19, 8"); a("s_add_u32 s27, s27, s28")
a("s_lshl_b32 s28, s26, 6"); a("s_add_u32 s27, s27, s28")
a("v_and_b32 v4, 31, v2"); a("v_lshlrev_b32 v4, 11, v4")
a("v_lshrrev_b32 v5, 5, v2"); a("v_lshl_add_u32 v4, v5, 4, v4")
a("s_waitcnt vmcnt(8)")
for i in range(16):
    a("v_add_f32 v%d, v%d, v%d" % (16 + i, 16 + i, 32 + i))
a("s_waitcnt vmcnt(0)")
for i in range(16):
    a("v_add_f32 v%d, v%d, v%d" % (48 + i, 48 + i, 64 + i))
for i in range(16):
    a("v_add_f32 v%d, v%d, v%d" % (16 + i, 16 + i, 48 + i))
for pair in range(2):
    d = 80 + pair * 4
    s0 = 16 + pair * 8
    a("v_cvt_pk_bf16_f32 v%d, v%d, v%d" % (d, s0, s0 + 1))
    a("v_cvt_pk_bf16_f32 v%d, v%d, v%d" % (d + 1, s0 + 2, s0 + 3))
    a("v_cvt_pk_bf16_f32 v%d, v%d, v%d" % (d + 2, s0 + 4, s0 + 5))
    a("v_cvt_pk_bf16_f32 v%d, v%d, v%d" % (d + 3, s0 + 6, s0 + 7))
a("s_nop 1")
for pair in range(2):
    d = 80 + pair * 4
    a("v_permlane32_swap_b32 v%d, v%d" % (d, d + 2))
    a("v_permlane32_swap_b32 v%d, v%d" % (d + 1, d + 3))
a("s_nop 1")
for pair in range(2):
    d = 80 + pair * 4
    a("buffer_store_dwordx4 v[%d:%d], v4, s[12:15], s27 offen offset:%d" % (d, d + 3, pair * 32))
a("s_waitcnt vmcnt(0)")
a("L_rend:")
a("s_endpgm")

tail = []
t = tail.append
t('.section .rodata,"a"')
for name, nv, acc in ((KN, 512, 256),):
    t(".p2align 6"); t(".amdhsa_kernel " + name)
    t("  .amdhsa_next_free_vgpr %d" % nv); t("  .amdhsa_next_free_sgpr 102"); t("  .amdhsa_accum_offset %d" % acc)
    t("  .amdhsa_group_segment_fixed_size 0"); t("  .amdhsa_kernarg_size 104"); t("  .amdhsa_user_sgpr_count 2")
    t("  .amdhsa_user_sgpr_kernarg_segment_ptr 1"); t("  .amdhsa_system_sgpr_workgroup_id_x 1"); t(".end_amdhsa_kernel")

open(sys.argv[1], "w").write("\n".join(hdr + body + tail) + "\n")
```
